```python
import torch

def _softmax(x, axis=-1):
    return torch.softmax(x, dim=axis)
def _gelu(x):
    return torch.nn.functional.gelu(x, approximate="tanh")
def _silu(x):
    return torch.nn.functional.silu(x)
def _sigmoid(x):
    return torch.sigmoid(x)
def _layernorm(x, axis=-1, eps=1e-5):
    m = x.mean(dim=axis, keepdim=True)
    v = x.var(dim=axis, keepdim=True, unbiased=False)
    return (x - m) / torch.sqrt(v + eps)
def _scatter_add(tgt, idx, src, axis=0):
    return tgt.clone().index_add_(axis, idx, src)
def _segment_sum(src, seg, n):
    out = torch.zeros((n,) + src.shape[1:], dtype=src.dtype)
    return out.index_add_(0, seg, src)
def _pad(x, pw):
    flat = tuple(v for pair in reversed(pw) for v in pair)
    return torch.nn.functional.pad(x, flat)

kernel_name = 'standalone__kv_cache_quant_int4_int2_kv_with_per_channel_or_per_token_scales__decode'

def setup_inputs():

    _w = (lambda a: (lambda t: t.to(torch.bfloat16) if t.is_floating_point() else t)(torch.as_tensor(a)))
    B = 8
    Sq = 1
    Skv = 4096
    Hq = 16
    Hkv = 8
    Dh = 256
    bits = 3
    G = 128
    if G <= 0 or G >= Skv:
        G = max(1, Skv // 2)
    Skv = (Skv // G) * G
    ngk = Skv // G
    qmax = (1 << bits) - 1
    return {
        "q": _w((lambda *s: torch.randn(*s, dtype=torch.bfloat16) * 3.2)(B, Hq, Sq, Dh)),
        "qk": _w(torch.randint(0, qmax + 1, (B, Hkv, Skv, Dh)).to(torch.int32)),
        "qv": _w(torch.randint(0, qmax + 1, (B, Hkv, Skv, Dh)).to(torch.int32)),
        "k_scales": _w(torch.abs((lambda *s: torch.randn(*s, dtype=torch.bfloat16) * 3.2)(B, Hkv, ngk, Dh)) * 0.05 + 0.02),
        "k_zeros": _w((lambda *s: torch.randn(*s, dtype=torch.bfloat16) * 3.2)(B, Hkv, ngk, Dh) + float(qmax) / 2.0),
        "v_scales": _w(torch.abs((lambda *s: torch.randn(*s, dtype=torch.bfloat16) * 0.05)(B, Hkv, Skv, 1)) * 0.05 + 0.02),
        "v_zeros": _w((lambda *s: torch.randn(*s, dtype=torch.bfloat16) * 0.05)(B, Hkv, Skv, 1) + float(qmax) / 2.0),
    }

def reference(q, qk, qv, k_scales, k_zeros, v_scales, v_zeros):
    B, Hq, Sq, Dh = q.shape
    Hkv, Skv = qk.shape[1], qk.shape[2]
    ngk = k_scales.shape[2]
    G = Skv // ngk
    ks = (lambda x, n, axis: torch.repeat_interleave(x, n, dim=axis))(k_scales, G, axis=2)
    kz = (lambda x, n, axis: torch.repeat_interleave(x, n, dim=axis))(k_zeros, G, axis=2)
    k = ((lambda x, dt: x.to(dt))(qk, q.dtype) - kz) * ks
    v = ((lambda x, dt: x.to(dt))(qv, q.dtype) - v_zeros) * v_scales
    rep = Hq // Hkv
    if rep > 1:
        k = (lambda x, n, axis: torch.repeat_interleave(x, n, dim=axis))(k, rep, axis=1)
        v = (lambda x, n, axis: torch.repeat_interleave(x, n, dim=axis))(v, rep, axis=1)
    scale = float(Dh) ** -0.5
    logits = torch.einsum("bhqd,bhkd->bhqk", q, k) * scale
    p = _softmax(logits, axis=-1)
    o = torch.einsum("bhqk,bhkd->bhqd", p, v)
    return o
```

```python
import re

TRANS = ("v_exp_f32", "v_log_f32", "v_rcp_f32", "v_rsq_f32", "v_sqrt_f32", "v_sin_f32", "v_cos_f32")

def regs_of(tok):
    tok = tok.strip()
    tok = tok.lstrip("-")
    m = re.fullmatch(r"abs\((.*)\)", tok)
    if m: tok = m.group(1)
    m = re.fullmatch(r"\|(.*)\|", tok)
    if m: tok = m.group(1)
    m = re.fullmatch(r"([vsa])(\d+)", tok)
    if m: return [(m.group(1), int(m.group(2)))]
    m = re.fullmatch(r"([vsa])\[(\d+):(\d+)\]", tok)
    if m: return [(m.group(1), i) for i in range(int(m.group(2)), int(m.group(3)) + 1)]
    if tok == "vcc": return [("s", 106), ("s", 107)]
    if tok == "vcc_lo": return [("s", 106)]
    if tok == "vcc_hi": return [("s", 107)]
    if tok == "exec": return [("s", 126), ("s", 127)]
    if tok == "m0": return [("s", 124)]
    return []

def split_ops(s):
    out, depth, cur = [], 0, ""
    for ch in s:
        if ch in "[(": depth += 1
        if ch in "])": depth -= 1
        if ch == "," and depth == 0:
            out.append(cur); cur = ""
        else:
            cur += ch
    if cur.strip(): out.append(cur)
    return [o.strip() for o in out]

class Asm:
    def __init__(self):
        self.lines = []
        self.t = 0
        self.w = {}
        self.store_rd = {}
        self.nops = 0
        self.count = {}

    def raw(self, s):
        self.lines.append(s)

    def comment(self, s):
        self.lines.append("    ; " + s)

    def label(self, name):
        self.flush()
        self.lines.append(name + ":")

    def flush(self, n=5):
        last = max([x[0] for x in self.w.values()] + [t for t in self.store_rd.values()] + [-100])
        need = n - (self.t - last - 1)
        if need > 0:
            self._nop(need)

    def _nop(self, n):
        while n > 0:
            k = min(n, 16)
            self.lines.append("    s_nop %d" % (k - 1))
            self.t += k
            self.nops += k
            n -= k

    def i(self, text):
        text = text.strip()
        sp = text.split(None, 1)
        mn = sp[0]
        rest = sp[1] if len(sp) > 1 else ""
        ops = split_ops(rest)
        mods = ""
        if ops:
            parts = ops[-1].split(None, 1)
            if len(parts) > 1:
                ops[-1] = parts[0]; mods = parts[1]
        self.count[mn] = self.count.get(mn, 0) + 1
        is_valu = mn.startswith("v_")
        is_vmem = mn.startswith(("buffer_", "global_", "flat_", "scratch_"))
        is_ds = mn.startswith("ds_")
        is_dpp = "_dpp" in mn or "quad_perm" in mods or "row_" in mods
        is_perm = mn.startswith("v_permlane")
        is_dot = mn.startswith("v_dot")
        is_trans = mn.split("_e32")[0].split("_e64")[0] in TRANS
        is_rdl = mn.startswith(("v_readlane", "v_readfirstlane"))
        base = mn.replace("_e32", "").replace("_e64", "").replace("_dpp", "")
        need = 0
        def age(r):
            return self.t - self.w[r][0] - 1
        def req(r, n, kinds=None):
            nonlocal need
            if r in self.w and (kinds is None or self.w[r][1] in kinds):
                need = max(need, n - age(r))
        writes, reads = [], []
        if is_valu:
            if is_perm:
                writes = regs_of(ops[0]) + regs_of(ops[1]); reads = list(writes)
            elif base.startswith("v_cmp"):
                writes = regs_of(ops[0]); reads = sum((regs_of(o) for o in ops[1:]), [])
            elif base in ("v_add_co_u32", "v_sub_co_u32", "v_addc_co_u32", "v_subb_co_u32"):
                writes = regs_of(ops[0]) + regs_of(ops[1]); reads = sum((regs_of(o) for o in ops[2:]), [])
            else:
                writes = regs_of(ops[0]); reads = sum((regs_of(o) for o in ops[1:]), [])
                if base in ("v_fmac_f32", "v_dot2c_f32_bf16", "v_writelane_b32") or is_dpp:
                    reads += writes
            VK = ("valu", "dot", "trans")
            for r in reads:
                if r[0] == "s":
                    req(r, 2, VK)
                else:
                    if is_dpp or is_perm: req(r, 2, VK)
                    if is_rdl: req(r, 1, VK)
                    if not is_trans: req(r, 1, ("trans",))
                    if r in self.w and self.w[r][1] == "dot":
                        same = self.w[r][2] == base
                        srcc = (base == "v_dot2c_f32_bf16" and r in writes) or (base == "v_dot2_f32_bf16" and r in regs_of(ops[3]) and r not in regs_of(ops[1]) + regs_of(ops[2]))
                        if not (same and srcc): req(r, 3)
            if is_rdl and len(ops) > 2:
                for r in regs_of(ops[2]): req(r, 4, VK)
            for r in writes:
                if r in self.w and self.w[r][1] == "dot" and not (is_dot and self.w[r][2] == base):
                    req(r, 3)
                if r in self.store_rd:
                    need = max(need, 2 - (self.t - self.store_rd[r] - 1))
        elif is_vmem or is_ds:
            allr = sum((regs_of(o) for o in ops), [])
            for r in allr:
                if r[0] == "s": req(r, 5, ("valu", "dot", "trans"))
                elif r in self.w and self.w[r][1] == "dot": req(r, 3)
            is_load = "load" in mn or "read" in mn or "bpermute" in mn or "swizzle" in mn or ("atomic" in mn and "sc0" in mods)
            if is_load:
                for r in regs_of(ops[0]):
                    if r in self.store_rd:
                        need = max(need, 1 - (self.t - self.store_rd[r] - 1))
        else:
            allr = sum((regs_of(o) for o in ops), [])
            for r in allr:
                if r[0] == "s": req(r, 2, ("valu", "dot", "trans"))
        if need > 0:
            self._nop(need)
        self.lines.append("    " + text)
        if is_valu:
            kind = "dot" if is_dot else ("trans" if is_trans else "valu")
            for r in writes:
                self.w[r] = (self.t, kind, base)
        elif is_vmem or is_ds:
            is_load = "load" in mn or "read" in mn or "bpermute" in mn or "swizzle" in mn
            if is_load:
                for r in regs_of(ops[0]): self.w.pop(r, None)
            if "store" in mn and ("x4" in mn or "x3" in mn):
                data = ops[0] if mn.startswith("buffer_") else ops[1]
                for r in regs_of(data): self.store_rd[r] = self.t
        else:
            if ops and not mn.startswith(("s_cmp", "s_cbranch", "s_branch", "s_waitcnt", "s_nop", "s_barrier", "s_endpgm", "s_setprio", "s_sleep")):
                for r in regs_of(ops[0]): self.w.pop(r, None)
        if mn == "s_nop":
            self.t += int(ops[0], 0) + 1
        else:
            self.t += 1

    def text(self):
        return "\n".join(self.lines) + "\n"
```

```python
import sys, math, struct
sys.path.insert(0, "gen")
from asmlib import Asm

NAME = "standalone__kv_cache_quant_int4_int2_kv_with_per_channel_or_per_token_scales__decode"
OUT = sys.argv[1] if len(sys.argv) > 1 else "cdna_kernels/%s.s" % NAME
opts = dict(a.split("=") for a in sys.argv[2:])
NT = opts.get("nt", "1") == "1"
LDFLAGS = opts.get("ldflags", " nt" if NT else "")
if LDFLAGS and not LDFLAGS.startswith(" "): LDFLAGS = " " + LDFLAGS.replace("+", " ")

def f32bits(x): return struct.unpack("<I", struct.pack("<f", x))[0]
CEXP = f32bits(math.log2(math.e) / 16.0)

WAVES = 16
NWG = 256
RING = 64
R = 16
LDS_STATS = WAVES * 2048
LDS_BYTES = LDS_STATS + 256
WS_STATS = 1 << 20

A = Asm()
I = A.i

header = """; Kernarg layout: q qk qv k_scales k_zeros v_scales v_zeros out debug ws (8 bytes each)
; split-KV decode attention over int-coded KV cache; kernel 1: per-workgroup partials, kernel 2: combine
; @launch kernel=%s_kernel grid=(%d,1,1) block=(%d,1,1) lds=%d
; @launch kernel=combine_kernel grid=(128,1,1) block=(256,1,1) lds=0
.amdgcn_target "amdgcn-amd-amdhsa--gfx950"
.text
.globl %s_kernel
.p2align 8
.type %s_kernel,@function
%s_kernel:""" % (NAME, NWG, WAVES * 64, LDS_BYTES, NAME, NAME, NAME)
A.raw(header)

def row(r): return RING + 4 * r
def rowr(r): return "v[%d:%d]" % (row(r), row(r) + 3)
VOFF = 2
KZ = 6; KS = 10; Q0 = 14; Q1 = 16
KP = 18
SA = 22
TA = 26; TB = 30
LA = 34; LB = 35
ACC = 36
TMP = 44
P = 52
M_ = 53; L_ = 54

def load_row(r):
    I("buffer_load_dwordx4 %s, v%d, s[24:27], s31 offen offset:%d%s" % (rowr(r), VOFF + r // 4, (r % 4) * 1024, LDFLAGS))

I("s_cmp_ge_u32 s2, %d" % NWG)
I("s_cbranch_scc1 L_end")
I("s_load_dwordx16 s[4:19], s[0:1], 0")
I("s_load_dwordx4 s[20:23], s[0:1], 64")
I("v_lshrrev_b32 v1, 6, v0")
I("v_readfirstlane_b32 s33, v1")
I("v_and_b32 v1, 63, v0")
I("v_lshlrev_b32 v2, 4, v1")
I("v_add_u32 v3, 0x1000, v2")
I("v_add_u32 v4, 0x2000, v2")
I("v_add_u32 v5, 0x3000, v2")
I("s_lshl_b32 s34, s2, 4")
I("s_add_u32 s34, s34, s33")
I("s_lshl_b32 s30, s34, 16")
I("s_mov_b32 s31, s30")
I("s_lshl_b32 s35, s34, 7")
I("s_lshr_b32 s36, s2, 2")
I("s_lshl_b32 s36, s36, 10")
I("s_lshr_b32 s37, s34, 1")
I("s_lshl_b32 s37, s37, 9")
I("v_lshlrev_b32 v44, 3, v1")
I("v_add_u32 v45, s36, v44")
I("v_add_u32 v46, s37, v44")
I("s_waitcnt lgkmcnt(0)")
I("s_mov_b32 s24, s6")
I("s_and_b32 s25, s7, 0xffff")
I("s_mov_b32 s26, 0x10000000")
I("s_mov_b32 s27, 0x00020000")
I("s_and_b32 s29, s9, 0xffff")
I("global_load_dwordx2 v[14:15], v45, s[4:5]")
I("global_load_dwordx2 v[16:17], v45, s[4:5] offset:512")
I("global_load_dwordx2 v[48:49], v46, s[12:13]")
I("global_load_dwordx2 v[50:51], v46, s[10:11]")
for r in range(R): load_row(r)
I("s_load_dwordx8 s[40:47], s[16:17], s35")
I("s_load_dwordx8 s[48:55], s[14:15], s35")
I("s_add_u32 s31, s31, 0x4000")
I("s_mov_b32 s32, 0")
I("s_mov_b32 s36, 0x11111111")
I("s_mov_b32 s37, 0x11111111")
for c in range(8): I("v_mov_b32 v%d, 0" % (ACC + c))
I("v_mov_b32 v%d, 0" % LA)
I("v_mov_b32 v%d, 0" % LB)
I("s_waitcnt vmcnt(%d)" % R)
I("v_lshlrev_b32 v6, 16, v48"); I("v_and_b32 v7, 0xffff0000, v48")
I("v_lshlrev_b32 v8, 16, v49"); I("v_and_b32 v9, 0xffff0000, v49")
I("v_lshlrev_b32 v10, 16, v50"); I("v_and_b32 v11, 0xffff0000, v50")
I("v_lshlrev_b32 v12, 16, v51"); I("v_and_b32 v13, 0xffff0000, v51")

def tree_step(T, j, s0, s1):
    T16, Tt, T8a, T8b = T, T + 1, T + 2, T + 3
    I("v_permlane32_swap_b32 v%d, v%d" % (s0, s1))
    if j % 2 == 0:
        I("v_add_f32 v%d, v%d, v%d" % (T16, s0, s1))
        return
    I("v_add_f32 v%d, v%d, v%d" % (Tt, s0, s1))
    I("v_permlane16_swap_b32 v%d, v%d" % (T16, Tt))
    T8 = T8a if (j >> 2) == 0 else T8b
    if (j >> 1) % 2 == 0:
        I("v_add_f32 v%d, v%d, v%d" % (T8, T16, Tt))
        return
    I("v_add_f32 v%d, v%d, v%d" % (Tt, T16, Tt))
    I("v_add_f32_dpp v%d, v%d, v%d row_ror:8 row_mask:0xf bank_mask:0x3" % (T8, T8, T8))
    I("v_add_f32_dpp v%d, v%d, v%d row_ror:8 row_mask:0xf bank_mask:0xc" % (T8, Tt, Tt))
    if (j >> 2) == 0:
        return
    I("v_add_f32_dpp v%d, v%d, v%d row_half_mirror row_mask:0xf bank_mask:0x5" % (T8a, T8a, T8a))
    I("v_add_f32_dpp v%d, v%d, v%d row_half_mirror row_mask:0xf bank_mask:0xa" % (T8a, T8b, T8b))
    I("v_add_f32_dpp v%d, v%d, v%d quad_perm:[1,0,3,2] row_mask:0xf bank_mask:0xf" % (T8a, T8a, T8a))
    I("v_add_f32_dpp v%d, v%d, v%d quad_perm:[2,3,0,1] row_mask:0xf bank_mask:0xf" % (T8a, T8a, T8a))

A.label("L_kloop")
for j in range(8):
    a, b = row(2 * j), row(2 * j + 1)
    I("s_waitcnt vmcnt(%d)" % (R - 2))
    regs = [a + c for c in range(4)] + [b + c for c in range(4)]
    for x in regs: I("v_cvt_f32_i32 v%d, v%d" % (x, x))
    for n, x in enumerate(regs): I("v_sub_f32 v%d, v%d, v%d" % (x, x, KZ + n % 4))
    for x in regs: I("v_cvt_pk_bf16_f32 v%d, 0, v%d" % (x, x))
    for n, x in enumerate(regs): I("v_mul_f32 v%d, v%d, v%d" % (x, x, KS + n % 4))
    I("v_cvt_pk_bf16_f32 v%d, v%d, v%d" % (KP + 0, a, a + 1))
    I("v_cvt_pk_bf16_f32 v%d, v%d, v%d" % (KP + 1, a + 2, a + 3))
    I("v_cvt_pk_bf16_f32 v%d, v%d, v%d" % (KP + 2, b, b + 1))
    I("v_cvt_pk_bf16_f32 v%d, v%d, v%d" % (KP + 3, b + 2, b + 3))
    load_row(2 * j); load_row(2 * j + 1)
    I("v_dot2_f32_bf16 v%d, v%d, v%d, 0" % (SA + 0, KP + 0, Q0))
    I("v_dot2_f32_bf16 v%d, v%d, v%d, 0" % (SA + 1, KP + 0, Q1))
    I("v_dot2_f32_bf16 v%d, v%d, v%d, 0" % (SA + 2, KP + 2, Q0))
    I("v_dot2_f32_bf16 v%d, v%d, v%d, 0" % (SA + 3, KP + 2, Q1))
    I("v_dot2_f32_bf16 v%d, v%d, v%d, v%d" % (SA + 0, KP + 1, Q0 + 1, SA + 0))
    I("v_dot2_f32_bf16 v%d, v%d, v%d, v%d" % (SA + 1, KP + 1, Q1 + 1, SA + 1))
    I("v_dot2_f32_bf16 v%d, v%d, v%d, v%d" % (SA + 2, KP + 3, Q0 + 1, SA + 2))
    I("v_dot2_f32_bf16 v%d, v%d, v%d, v%d" % (SA + 3, KP + 3, Q1 + 1, SA + 3))
    tree_step(TA, j, SA + 0, SA + 1)
    tree_step(TB, j, SA + 2, SA + 3)
I("v_cndmask_b32 v%d, v%d, v%d, s[36:37]" % (LA, LA, TA + 2))
I("v_cndmask_b32 v%d, v%d, v%d, s[36:37]" % (LB, LB, TB + 2))
I("s_lshl_b64 s[36:37], s[36:37], 1")
I("s_add_u32 s31, s31, 0x4000")
I("s_add_u32 s32, s32, 1")
I("s_cmp_eq_u32 s32, 3")
I("s_cselect_b32 s24, s8, s24")
I("s_cselect_b32 s25, s29, s25")
I("s_cselect_b32 s31, s30, s31")
I("s_cmp_lt_u32 s32, 4")
A.flush()
I("s_cbranch_scc1 L_kloop")

t, t2, eA, eB = TMP, TMP + 1, TMP + 2, TMP + 3
I("v_cvt_pk_bf16_f32 v%d, 0, v%d" % (LA, LA))
I("v_cvt_pk_bf16_f32 v%d, 0, v%d" % (LB, LB))
I("v_max_f32 v%d, v%d, v%d" % (t, LA, LB))
def allreduce32(op, t, t2):
    for ctl in ("quad_perm:[1,0,3,2]", "quad_perm:[2,3,0,1]", "row_half_mirror", "row_mirror"):
        I("%s_dpp v%d, v%d, v%d %s row_mask:0xf bank_mask:0xf" % (op, t, t, t, ctl))
    I("v_mov_b32 v%d, v%d" % (t2, t))
    I("v_permlane16_swap_b32 v%d, v%d" % (t, t2))
    I("%s v%d, v%d, v%d" % (op, t, t, t2))
allreduce32("v_max_f32", t, t2)
I("v_mov_b32 v%d, v%d" % (M_, t))
I("s_mov_b32 s92, 0x%08x" % CEXP)
I("v_sub_f32 v%d, v%d, v%d" % (eA, LA, M_))
I("v_sub_f32 v%d, v%d, v%d" % (eB, LB, M_))
I("v_mul_f32 v%d, s92, v%d" % (eA, eA))
I("v_mul_f32 v%d, s92, v%d" % (eB, eB))
I("v_exp_f32 v%d, v%d" % (eA, eA))
I("v_exp_f32 v%d, v%d" % (eB, eB))
I("v_add_f32 v%d, v%d, v%d" % (t, eA, eB))
I("v_cvt_pk_bf16_f32 v%d, v%d, v%d" % (P, eA, eB))
allreduce32("v_add_f32", t, t2)
I("v_mov_b32 v%d, v%d" % (L_, t))
I("s_mov_b32 s32, 0")

def lane_of(h, j): return h * 32 + (j & 1) * 16 + ((j >> 1) & 1) * 8 + ((j >> 2) & 1) * 4
def v_iter(last):
    I("s_waitcnt lgkmcnt(0)")
    for k in range(8):
        I("s_lshl_b32 s%d, s%d, 16" % (56 + 2 * k, 40 + k))
        I("s_and_b32 s%d, s%d, 0xffff0000" % (57 + 2 * k, 40 + k))
        I("s_lshl_b32 s%d, s%d, 16" % (72 + 2 * k, 48 + k))
        I("s_and_b32 s%d, s%d, 0xffff0000" % (73 + 2 * k, 48 + k))
    if not last:
        I("s_add_u32 s35, s35, 32")
        I("s_load_dwordx8 s[40:47], s[16:17], s35")
        I("s_load_dwordx8 s[48:55], s[14:15], s35")
    for j in range(8):
        a, b = row(2 * j), row(2 * j + 1)
        sp = 88 + 2 * (j % 2)
        I("v_readlane_b32 s%d, v%d, %d" % (sp, P, lane_of(0, j)))
        I("v_readlane_b32 s%d, v%d, %d" % (sp + 1, P, lane_of(1, j)))
        I("s_waitcnt vmcnt(%d)" % ((R - 2 - 2 * j) if last else (R - 2)))
        regs = [a + c for c in range(4)] + [b + c for c in range(4)]
        for x in regs: I("v_cvt_f32_i32 v%d, v%d" % (x, x))
        for n, x in enumerate(regs): I("v_subrev_f32 v%d, s%d, v%d" % (x, 56 + 2 * j + n // 4, x))
        for x in regs: I("v_cvt_pk_bf16_f32 v%d, 0, v%d" % (x, x))
        for n, x in enumerate(regs): I("v_mul_f32 v%d, s%d, v%d" % (x, 72 + 2 * j + n // 4, x))
        for c in range(4): I("v_cvt_pk_bf16_f32 v%d, v%d, v%d" % (KP + c, a + c, b + c))
        if not last:
            load_row(2 * j); load_row(2 * j + 1)
        for h in range(2):
            for c in range(4):
                I("v_dot2c_f32_bf16 v%d, s%d, v%d" % (ACC + 4 * h + c, sp + h, KP + c))
    if not last:
        I("v_mov_b32_dpp v%d, v%d quad_perm:[1,2,3,0] row_mask:0xf bank_mask:0xf" % (P, P))

I("s_add_u32 s31, s30, 0x4000")
A.label("L_vloop")
v_iter(False)
I("s_add_u32 s31, s31, 0x4000")
I("s_add_u32 s32, s32, 1")
I("s_cmp_lt_u32 s32, 3")
A.flush()
I("s_cbranch_scc1 L_vloop")
v_iter(True)

I("s_lshl_b32 s36, s33, 11")
I("v_add_u32 v44, s36, v2")
I("ds_write_b128 v44, v[%d:%d]" % (ACC, ACC + 3))
I("ds_write_b128 v44, v[%d:%d] offset:1024" % (ACC + 4, ACC + 7))
I("v_lshrrev_b32 v45, 5, v1")
I("v_lshlrev_b32 v45, 6, v45")
I("s_lshl_b32 s36, s33, 2")
I("s_add_u32 s36, s36, %d" % LDS_STATS)
I("v_add_u32 v45, s36, v45")
I("ds_write_b32 v45, v%d" % M_)
I("ds_write_b32 v45, v%d offset:128" % L_)
I("s_waitcnt lgkmcnt(0)")
I("s_barrier")
I("s_cmp_ge_u32 s33, 8")
I("s_cbranch_scc1 L_end")
I("v_lshrrev_b32 v45, 8, v0")
I("v_lshlrev_b32 v45, 6, v45")
I("v_add_u32 v45, %d, v45" % LDS_STATS)
for k in range(4): I("ds_read_b128 v[%d:%d], v45 offset:%d" % (64 + 4 * k, 67 + 4 * k, 16 * k))
for k in range(4): I("ds_read_b128 v[%d:%d], v45 offset:%d" % (80 + 4 * k, 83 + 4 * k, 128 + 16 * k))
I("v_lshlrev_b32 v46, 2, v0")
for w in range(16): I("ds_read_b32 v%d, v46 offset:%d" % (96 + w, w * 2048))
I("s_waitcnt lgkmcnt(0)")
I("v_max_f32 v44, v64, v65")
for w in range(2, 16): I("v_max_f32 v44, v44, v%d" % (64 + w))
for w in range(16):
    I("v_sub_f32 v%d, v%d, v44" % (64 + w, 64 + w))
    I("v_mul_f32 v%d, s92, v%d" % (64 + w, 64 + w))
    I("v_exp_f32 v%d, v%d" % (64 + w, 64 + w))
I("v_mul_f32 v47, v64, v80")
I("v_mul_f32 v48, v64, v96")
for w in range(1, 16):
    I("v_fmac_f32 v47, v%d, v%d" % (64 + w, 80 + w))
    I("v_fmac_f32 v48, v%d, v%d" % (64 + w, 96 + w))
I("s_lshl_b32 s36, s2, 11")
I("v_add_u32 v46, s36, v46")
I("global_store_dword v46, v48, s[22:23]")
I("v_and_b32 v49, 255, v0")
I("v_cmp_eq_u32 vcc, 0, v49")
I("v_lshrrev_b32 v49, 8, v0")
I("v_lshlrev_b32 v49, 3, v49")
I("s_lshl_b32 s36, s2, 4")
I("s_add_u32 s36, s36, %d" % WS_STATS)
I("v_add_u32 v49, s36, v49")
I("v_mov_b32 v45, v47")
I("s_and_saveexec_b64 s[38:39], vcc")
I("s_cbranch_execz L_end")
I("global_store_dwordx2 v49, v[44:45], s[22:23]")
A.label("L_end")
I("s_endpgm")

A.raw("""
.globl combine_kernel
.p2align 8
.type combine_kernel,@function
combine_kernel:""")
I("s_cmp_ge_u32 s2, 128")
I("s_cbranch_scc1 L_end2")
I("s_load_dwordx2 s[4:5], s[0:1], 56")
I("s_load_dwordx2 s[6:7], s[0:1], 72")
I("s_lshr_b32 s8, s2, 1")
I("s_and_b32 s9, s2, 1")
I("s_lshl_b32 s10, s8, 3")
I("s_add_u32 s10, s10, s9")
I("s_lshl_b32 s11, s10, 3")
I("s_add_u32 s11, s11, %d" % WS_STATS)
I("s_lshl_b32 s12, s10, 10")
I("v_lshlrev_b32 v1, 2, v0")
I("v_add_u32 v1, s12, v1")
I("s_waitcnt lgkmcnt(0)")
I("s_add_u32 s14, s6, s11")
I("s_addc_u32 s15, s7, 0")
for s in range(4): I("s_load_dwordx2 s[%d:%d], s[14:15], %d" % (16 + 2 * s, 17 + 2 * s, 16 * s))
I("v_add_u32 v2, 0x1000, v1")
I("global_load_dword v4, v1, s[6:7]")
I("global_load_dword v5, v1, s[6:7] offset:2048")
I("global_load_dword v6, v2, s[6:7]")
I("global_load_dword v7, v2, s[6:7] offset:2048")
I("s_mov_b32 s24, 0x%08x" % CEXP)
I("s_waitcnt lgkmcnt(0)")
I("v_mov_b32 v8, s16")
I("v_max_f32 v8, s18, v8")
I("v_max_f32 v8, s20, v8")
I("v_max_f32 v8, s22, v8")
for s in range(4):
    I("v_sub_f32 v%d, s%d, v8" % (9 + s, 16 + 2 * s))
    I("v_mul_f32 v%d, s24, v%d" % (9 + s, 9 + s))
    I("v_exp_f32 v%d, v%d" % (9 + s, 9 + s))
I("v_mul_f32 v13, s17, v9")
I("v_mov_b32 v14, s19"); I("v_fmac_f32 v13, v14, v10")
I("v_mov_b32 v14, s21"); I("v_fmac_f32 v13, v14, v11")
I("v_mov_b32 v14, s23"); I("v_fmac_f32 v13, v14, v12")
I("v_rcp_f32 v13, v13")
I("s_waitcnt vmcnt(0)")
I("v_mul_f32 v14, v4, v9")
I("v_fmac_f32 v14, v5, v10")
I("v_fmac_f32 v14, v6, v11")
I("v_fmac_f32 v14, v7, v12")
I("v_mul_f32 v14, v14, v13")
I("v_cvt_pk_bf16_f32 v14, v14, v14")
I("s_lshl_b32 s12, s2, 9")
I("v_lshlrev_b32 v1, 1, v0")
I("v_add_u32 v1, s12, v1")
I("global_store_short v1, v14, s[4:5]")
A.label("L_end2")
I("s_endpgm")

A.raw("""
.section .rodata,"a"
.p2align 6
.amdhsa_kernel %s_kernel
  .amdhsa_next_free_vgpr 128
  .amdhsa_next_free_sgpr 96
  .amdhsa_accum_offset 128
  .amdhsa_group_segment_fixed_size 0
  .amdhsa_kernarg_size 80
  .amdhsa_user_sgpr_count 2
  .amdhsa_user_sgpr_kernarg_segment_ptr 1
  .amdhsa_system_sgpr_workgroup_id_x 1
  .amdhsa_float_denorm_mode_32 3
.end_amdhsa_kernel
.p2align 6
.amdhsa_kernel combine_kernel
  .amdhsa_next_free_vgpr 16
  .amdhsa_next_free_sgpr 32
  .amdhsa_accum_offset 16
  .amdhsa_group_segment_fixed_size 0
  .amdhsa_kernarg_size 80
  .amdhsa_user_sgpr_count 2
  .amdhsa_user_sgpr_kernarg_segment_ptr 1
  .amdhsa_system_sgpr_workgroup_id_x 1
  .amdhsa_float_denorm_mode_32 3
.end_amdhsa_kernel
""" % NAME)
open(OUT, "w").write(A.text())
print("wrote", OUT, "nops", A.nops, "lines", len(A.lines))
```

```python
import sys, math, struct
sys.path.insert(0, "gen")
from asmlib import Asm

NAME = "standalone__kv_cache_quant_int4_int2_kv_with_per_channel_or_per_token_scales__decode"
OUT = sys.argv[1] if len(sys.argv) > 1 else "cdna_kernels/%s.s" % NAME
opts = dict(a.split("=") for a in sys.argv[2:])
LDFLAGS = " " + opts.get("ldflags", "nt").replace("+", " ")
ONE = opts.get("one", "0") == "1"
STAMP = opts.get("stamp", "0") == "1"
R = int(opts.get("R", "16"))
Q = int(opts.get("Q", "4"))
WAVES = 4 * Q
NT = 4 // Q
NWG = 256
NSLOT = 16
def f32bits(x): return struct.unpack("<I", struct.pack("<f", x))[0]
CEXP = f32bits(math.log2(math.e) / 16.0)
RING = 72
NVG = RING + 4 * R
NVG = max(NVG, 120)
NVG = int(opts.get("vgpr", str((NVG + 7) // 8 * 8)))
LDS_STATS = NSLOT * 2048
LDS_BYTES = max(LDS_STATS + 512, int(opts.get("lds", "0")))
WS_STATS = 8 << 20

A = Asm()
I = A.i

header = """; Kernarg layout: q qk qv k_scales k_zeros v_scales v_zeros out debug ws (8 bytes each)
; split-KV decode attention over int-coded KV cache; kernel 1: per-workgroup partials, kernel 2: combine
; @launch kernel=%s_kernel grid=(%d,1,1) block=(%d,1,1) lds=%d
; @launch kernel=combine_kernel grid=(128,1,1) block=(256,1,1) lds=0
.amdgcn_target "amdgcn-amd-amdhsa--gfx950"
.text
.globl %s_kernel
.p2align 8
.type %s_kernel,@function
%s_kernel:""" % (NAME, NWG, WAVES * 64, LDS_BYTES, NAME, NAME, NAME)
if ONE: header = header.replace("; @launch kernel=combine_kernel", "; no launch of combine_kernel")
A.raw(header)

def row(r): return RING + 4 * (r % R)
def rowr(r): return "v[%d:%d]" % (row(r), row(r) + 3)
VROW = 2
VL16 = 3
VL8 = 4
VTOK = 5
KZ = 6; KS = 10; Q0 = 14; Q1 = 16
KP = 18; SA = 22; TA = 26; TB = 30; LA = 34; LB = 35; ACC = 36; TMP = 44; P = 52; M_ = 53; L_ = 54
ZSA = 55; ZSB = 56; ZSAn = 57; ZSBn = 58
RAW = 60
VT = 68

def load_row(r):
    if r < 16: srd, so, rr = "s[24:27]", "s31", r
    else: srd, so, rr = "s[96:99]", "s95", r - 16
    if rr:
        I("s_add_u32 s3, %s, 0x%x" % (so, rr * 4096)); so = "s3"
    I("buffer_load_dwordx4 %s, v%d, %s, %s offen%s" % (rowr(r), VROW, srd, so, LDFLAGS))

def small_loads():
    I("s_lshl_b32 s36, s34, 10")
    I("v_add_u32 v%d, s36, v%d" % (VT, VL8))
    I("s_lshl_b32 s36, s34, 9")
    I("v_add_u32 v%d, s36, v%d" % (VT + 1, VTOK))
    I("global_load_dwordx2 v[%d:%d], v%d, s[12:13]" % (RAW, RAW + 1, VT))
    I("global_load_dwordx2 v[%d:%d], v%d, s[12:13] offset:512" % (RAW + 2, RAW + 3, VT))
    I("global_load_dwordx2 v[%d:%d], v%d, s[10:11]" % (RAW + 4, RAW + 5, VT))
    I("global_load_dwordx2 v[%d:%d], v%d, s[10:11] offset:512" % (RAW + 6, RAW + 7, VT))
    I("global_load_ushort v57, v%d, s[16:17]" % (VT + 1))
    I("global_load_ushort v58, v%d, s[14:15]" % (VT + 1))
    I("global_load_ushort v59, v%d, s[16:17] offset:8" % (VT + 1))
    I("global_load_ushort v70, v%d, s[14:15] offset:8" % (VT + 1))

def unpack(g):
    z, s = RAW + 2 * g, RAW + 4 + 2 * g
    I("v_lshlrev_b32 v%d, 16, v%d" % (KZ, z)); I("v_and_b32 v%d, 0xffff0000, v%d" % (KZ + 1, z))
    I("v_lshlrev_b32 v%d, 16, v%d" % (KZ + 2, z + 1)); I("v_and_b32 v%d, 0xffff0000, v%d" % (KZ + 3, z + 1))
    I("v_lshlrev_b32 v%d, 16, v%d" % (KS, s)); I("v_and_b32 v%d, 0xffff0000, v%d" % (KS + 1, s))
    I("v_lshlrev_b32 v%d, 16, v%d" % (KS + 2, s + 1)); I("v_and_b32 v%d, 0xffff0000, v%d" % (KS + 3, s + 1))

I("s_cmp_ge_u32 s2, %d" % NWG)
I("s_cbranch_scc1 L_end")
if STAMP: I("s_memrealtime s[100:101]")
I("s_load_dwordx16 s[4:19], s[0:1], 0")
I("s_load_dwordx4 s[20:23], s[0:1], 64")
I("v_lshrrev_b32 v1, 6, v0")
I("v_readfirstlane_b32 s33, v1")
I("v_and_b32 v1, 63, v0")
I("v_lshlrev_b32 v%d, 4, v1" % VL16)
I("v_lshlrev_b32 v%d, 3, v1" % VL8)
I("s_and_b32 s36, s33, 3")
I("s_lshr_b32 s37, s33, 2")
I("s_lshl_b32 s38, s36, 10")
I("v_add_u32 v%d, s38, v%d" % (VROW, VL16))
I("v_and_b32 v44, 3, v1")
I("v_lshlrev_b32 v44, 7, v44")
I("v_bfe_u32 v45, v1, 4, 1")
I("v_lshl_add_u32 v44, v45, 4, v44")
I("v_bfe_u32 v45, v1, 3, 1")
I("v_lshl_add_u32 v44, v45, 5, v44")
I("v_bfe_u32 v45, v1, 2, 1")
I("v_lshl_add_u32 v44, v45, 6, v44")
I("s_lshl_b32 s38, s36, 1")
I("v_add_u32 v%d, s38, v44" % VTOK)
I("s_mul_i32 s38, s37, %d" % NT)
I("s_lshl_b32 s34, s2, 2")
I("s_add_u32 s34, s34, s38")
I("s_lshl_b32 s28, s38, 2")
I("s_add_u32 s28, s28, s36")
I("s_mov_b32 s93, %d" % NT)
I("s_lshr_b32 s38, s2, 2")
I("s_lshl_b32 s38, s38, 10")
I("v_add_u32 v45, s38, v%d" % VL8)
I("s_mov_b32 s92, 0x%08x" % CEXP)
I("s_lshl_b32 s30, s34, 18")
I("s_mov_b32 s31, s30")
I("s_add_u32 s95, s30, 0x10000")
I("s_waitcnt lgkmcnt(0)")
I("s_and_b32 s7, s7, 0xffff")
I("s_and_b32 s9, s9, 0xffff")
I("s_mov_b32 s24, s6"); I("s_mov_b32 s25, s7")
I("s_mov_b32 s26, 0x10000000")
I("s_mov_b32 s27, 0x00020000")
I("s_mov_b32 s96, s6"); I("s_mov_b32 s97, s7")
I("s_mov_b32 s98, 0x10000000")
I("s_mov_b32 s99, 0x00020000")
I("global_load_dwordx2 v[14:15], v45, s[4:5]")
I("global_load_dwordx2 v[16:17], v45, s[4:5] offset:512")
small_loads()
for r in range(R): load_row(r)

def tree_step(Tr, j, s0, s1):
    T16, Tt, T8a, T8b = Tr, Tr + 1, Tr + 2, Tr + 3
    I("v_permlane32_swap_b32 v%d, v%d" % (s0, s1))
    if j % 2 == 0:
        I("v_add_f32 v%d, v%d, v%d" % (T16, s0, s1)); return
    I("v_add_f32 v%d, v%d, v%d" % (Tt, s0, s1))
    I("v_permlane16_swap_b32 v%d, v%d" % (T16, Tt))
    T8 = T8a if (j >> 2) == 0 else T8b
    if (j >> 1) % 2 == 0:
        I("v_add_f32 v%d, v%d, v%d" % (T8, T16, Tt)); return
    I("v_add_f32 v%d, v%d, v%d" % (Tt, T16, Tt))
    I("v_add_f32_dpp v%d, v%d, v%d row_ror:8 row_mask:0xf bank_mask:0x3" % (T8, T8, T8))
    I("v_add_f32_dpp v%d, v%d, v%d row_ror:8 row_mask:0xf bank_mask:0xc" % (T8, Tt, Tt))
    if (j >> 2) == 0: return
    I("v_add_f32_dpp v%d, v%d, v%d row_half_mirror row_mask:0xf bank_mask:0x5" % (T8a, T8a, T8a))
    I("v_add_f32_dpp v%d, v%d, v%d row_half_mirror row_mask:0xf bank_mask:0xa" % (T8a, T8b, T8b))
    I("v_add_f32_dpp v%d, v%d, v%d quad_perm:[1,0,3,2] row_mask:0xf bank_mask:0xf" % (T8a, T8a, T8a))
    I("v_add_f32_dpp v%d, v%d, v%d quad_perm:[2,3,0,1] row_mask:0xf bank_mask:0xf" % (T8a, T8a, T8a))

A.label("L_task")
I("s_waitcnt vmcnt(%d)" % R)
unpack(0)
I("v_lshl_or_b32 v%d, v58, 16, v57" % ZSA)
I("v_lshl_or_b32 v%d, v70, 16, v59" % ZSB)
for c in range(8): I("v_mov_b32 v%d, 0" % (ACC + c))
I("s_mov_b32 s32, 0")
I("s_mov_b32 s36, 0x11111111")
I("s_mov_b32 s37, 0x11111111")

A.label("L_kloop")
for j in range(8):
    a, b = row(2 * j), row(2 * j + 1)
    I("s_waitcnt vmcnt(%d)" % (R - 2))
    regs = [a + c for c in range(4)] + [b + c for c in range(4)]
    for x in regs: I("v_cvt_f32_i32 v%d, v%d" % (x, x))
    for n, x in enumerate(regs): I("v_sub_f32 v%d, v%d, v%d" % (x, x, KZ + n % 4))
    for x in regs: I("v_cvt_pk_bf16_f32 v%d, 0, v%d" % (x, x))
    for n, x in enumerate(regs): I("v_mul_f32 v%d, v%d, v%d" % (x, x, KS + n % 4))
    I("v_cvt_pk_bf16_f32 v%d, v%d, v%d" % (KP + 0, a, a + 1))
    I("v_cvt_pk_bf16_f32 v%d, v%d, v%d" % (KP + 1, a + 2, a + 3))
    I("v_cvt_pk_bf16_f32 v%d, v%d, v%d" % (KP + 2, b, b + 1))
    I("v_cvt_pk_bf16_f32 v%d, v%d, v%d" % (KP + 3, b + 2, b + 3))
    load_row(2 * j + R); load_row(2 * j + 1 + R)
    I("v_dot2_f32_bf16 v%d, v%d, v%d, 0" % (SA + 0, KP + 0, Q0))
    I("v_dot2_f32_bf16 v%d, v%d, v%d, 0" % (SA + 1, KP + 0, Q1))
    I("v_dot2_f32_bf16 v%d, v%d, v%d, 0" % (SA + 2, KP + 2, Q0))
    I("v_dot2_f32_bf16 v%d, v%d, v%d, 0" % (SA + 3, KP + 2, Q1))
    I("v_dot2_f32_bf16 v%d, v%d, v%d, v%d" % (SA + 0, KP + 1, Q0 + 1, SA + 0))
    I("v_dot2_f32_bf16 v%d, v%d, v%d, v%d" % (SA + 1, KP + 1, Q1 + 1, SA + 1))
    I("v_dot2_f32_bf16 v%d, v%d, v%d, v%d" % (SA + 2, KP + 3, Q0 + 1, SA + 2))
    I("v_dot2_f32_bf16 v%d, v%d, v%d, v%d" % (SA + 3, KP + 3, Q1 + 1, SA + 3))
    tree_step(TA, j, SA + 0, SA + 1)
    tree_step(TB, j, SA + 2, SA + 3)
I("v_cndmask_b32 v%d, v%d, v%d, s[36:37]" % (LA, LA, TA + 2))
I("v_cndmask_b32 v%d, v%d, v%d, s[36:37]" % (LB, LB, TB + 2))
I("s_lshl_b64 s[36:37], s[36:37], 1")
I("s_add_u32 s32, s32, 1")
I("s_mov_b32 s24, s96"); I("s_mov_b32 s25, s97"); I("s_mov_b32 s31, s95")
I("s_add_u32 s95, s95, 0x10000")
I("s_cmp_eq_u32 s32, 3")
I("s_cselect_b32 s96, s8, s96")
I("s_cselect_b32 s97, s9, s97")
I("s_cselect_b32 s95, s30, s95")
I("s_cmp_lg_u32 s32, 2")
I("s_cbranch_scc1 L_nosw")
unpack(1)
A.label("L_nosw")
I("s_cmp_lt_u32 s32, 4")
A.flush()
I("s_cbranch_scc1 L_kloop")

t, t2, eA, eB = TMP, TMP + 1, TMP + 2, TMP + 3
I("v_cvt_pk_bf16_f32 v%d, 0, v%d" % (LA, LA))
I("v_cvt_pk_bf16_f32 v%d, 0, v%d" % (LB, LB))
I("v_max_f32 v%d, v%d, v%d" % (t, LA, LB))
def allreduce32(op, t, t2):
    for ctl in ("quad_perm:[1,0,3,2]", "quad_perm:[2,3,0,1]", "row_half_mirror", "row_mirror"):
        I("%s_dpp v%d, v%d, v%d %s row_mask:0xf bank_mask:0xf" % (op, t, t, t, ctl))
    I("v_mov_b32 v%d, v%d" % (t2, t))
    I("v_permlane16_swap_b32 v%d, v%d" % (t, t2))
    I("%s v%d, v%d, v%d" % (op, t, t, t2))
allreduce32("v_max_f32", t, t2)
I("v_mov_b32 v%d, v%d" % (M_, t))
I("v_sub_f32 v%d, v%d, v%d" % (eA, LA, M_))
I("v_sub_f32 v%d, v%d, v%d" % (eB, LB, M_))
I("v_mul_f32 v%d, s92, v%d" % (eA, eA))
I("v_mul_f32 v%d, s92, v%d" % (eB, eB))
I("v_exp_f32 v%d, v%d" % (eA, eA))
I("v_exp_f32 v%d, v%d" % (eB, eB))
I("v_add_f32 v%d, v%d, v%d" % (t, eA, eB))
I("v_cvt_pk_bf16_f32 v%d, v%d, v%d" % (P, eA, eB))
allreduce32("v_add_f32", t, t2)
I("v_mov_b32 v%d, v%d" % (L_, t))
I("s_mov_b32 s32, 0")
I("s_sub_u32 s93, s93, 1")
if NT > 1:
    I("s_cmp_eq_u32 s93, 0")
    I("s_cbranch_scc1 L_nonext")
    I("s_add_u32 s34, s34, 1")
    I("s_lshl_b32 s30, s34, 18")
    small_loads()
    A.label("L_nonext")

def lane_of(h, j): return h * 32 + (j & 1) * 16 + ((j >> 1) & 1) * 8 + ((j >> 2) & 1) * 4
A.label("L_vloop")
for j in range(8):
    a, b = row(2 * j), row(2 * j + 1)
    sp = 40 + 8 * (j % 2)
    I("v_readlane_b32 s%d, v%d, %d" % (sp + 2, ZSA, lane_of(0, j)))
    I("v_readlane_b32 s%d, v%d, %d" % (sp + 3, ZSB, lane_of(0, j)))
    I("v_readlane_b32 s%d, v%d, %d" % (sp, P, lane_of(0, j)))
    I("v_readlane_b32 s%d, v%d, %d" % (sp + 1, P, lane_of(1, j)))
    I("s_lshl_b32 s%d, s%d, 16" % (sp + 4, sp + 2))
    I("s_and_b32 s%d, s%d, 0xffff0000" % (sp + 5, sp + 2))
    I("s_lshl_b32 s%d, s%d, 16" % (sp + 6, sp + 3))
    I("s_and_b32 s%d, s%d, 0xffff0000" % (sp + 7, sp + 3))
    I("s_waitcnt vmcnt(%d)" % (R - 2))
    regs = [a + c for c in range(4)] + [b + c for c in range(4)]
    for x in regs: I("v_cvt_f32_i32 v%d, v%d" % (x, x))
    for n, x in enumerate(regs): I("v_subrev_f32 v%d, s%d, v%d" % (x, sp + 4 + 2 * (n // 4), x))
    for x in regs: I("v_cvt_pk_bf16_f32 v%d, 0, v%d" % (x, x))
    for n, x in enumerate(regs): I("v_mul_f32 v%d, s%d, v%d" % (x, sp + 5 + 2 * (n // 4), x))
    for c in range(4): I("v_cvt_pk_bf16_f32 v%d, v%d, v%d" % (KP + c, a + c, b + c))
    load_row(2 * j + R); load_row(2 * j + 1 + R)
    for h in range(2):
        for c in range(4):
            I("v_dot2c_f32_bf16 v%d, s%d, v%d" % (ACC + 4 * h + c, sp + h, KP + c))
for x in (P, ZSA, ZSB):
    I("v_mov_b32_dpp v%d, v%d quad_perm:[1,2,3,0] row_mask:0xf bank_mask:0xf" % (x, x))
I("s_add_u32 s32, s32, 1")
I("s_mov_b32 s24, s96"); I("s_mov_b32 s25, s97"); I("s_mov_b32 s26, s98"); I("s_mov_b32 s31, s95")
I("s_add_u32 s95, s95, 0x10000")
I("s_cmp_eq_u32 s32, 3")
I("s_cselect_b32 s96, s6, s96")
I("s_cselect_b32 s97, s7, s97")
I("s_cselect_b32 s95, s30, s95")
I("s_cselect_b32 s36, 1, 0")
I("s_cmp_eq_u32 s93, 0")
I("s_cselect_b32 s36, s36, 0")
I("s_cmp_eq_u32 s36, 1")
I("s_cselect_b32 s98, 0, s98")
I("s_cmp_lt_u32 s32, 4")
A.flush()
I("s_cbranch_scc1 L_vloop")

I("s_lshl_b32 s36, s28, 11")
I("v_add_u32 v44, s36, v%d" % VL16)
I("ds_write_b128 v44, v[%d:%d]" % (ACC, ACC + 3))
I("ds_write_b128 v44, v[%d:%d] offset:1024" % (ACC + 4, ACC + 7))
I("v_lshrrev_b32 v45, 5, v1")
I("v_lshlrev_b32 v45, 7, v45")
I("s_lshl_b32 s36, s28, 2")
I("s_add_u32 s36, s36, %d" % LDS_STATS)
I("v_add_u32 v45, s36, v45")
I("ds_write_b32 v45, v%d" % M_)
I("ds_write_b32 v45, v%d offset:256" % L_)
if NT > 1:
    I("s_add_u32 s28, s28, 4")
    I("s_cmp_lg_u32 s93, 0")
    A.flush()
    I("s_cbranch_scc1 L_task")
if STAMP:
    I("s_memrealtime s[38:39]")
    I("s_getreg_b32 s94, hwreg(HW_REG_XCC_ID)")
    I("s_waitcnt lgkmcnt(0)")
    I("v_mov_b32 v60, s100"); I("v_mov_b32 v61, s28"); I("v_mov_b32 v62, s38"); I("v_mov_b32 v63, s94")
    I("s_mul_i32 s39, s2, 16")
    I("s_add_u32 s39, s39, s33")
    I("s_lshl_b32 s39, s39, 4")
    I("s_add_u32 s39, s39, 0x1000000")
    I("v_mov_b32 v59, s39")
    I("global_store_dwordx4 v59, v[60:63], s[22:23]")
I("s_waitcnt vmcnt(0) lgkmcnt(0)")
I("s_barrier")
nthreads = WAVES * 64
reps = max(1, 512 // nthreads)
if nthreads > 512:
    I("s_cmp_ge_u32 s33, 8")
    I("s_cbranch_scc1 L_end")
MB, LBs, AB = 60, 80, 100
for k in range(reps):
    I("v_add_u32 v50, %d, v0" % (k * nthreads))
    I("v_lshrrev_b32 v45, 8, v50")
    I("v_lshlrev_b32 v45, 7, v45")
    I("v_add_u32 v45, %d, v45" % LDS_STATS)
    for w in range(NSLOT): I("ds_read_b32 v%d, v45 offset:%d" % (MB + w, 4 * w))
    for w in range(NSLOT): I("ds_read_b32 v%d, v45 offset:%d" % (LBs + w, 256 + 4 * w))
    I("v_lshlrev_b32 v46, 2, v50")
    for w in range(NSLOT): I("ds_read_b32 v%d, v46 offset:%d" % (AB + w, w * 2048))
    I("s_waitcnt lgkmcnt(0)")
    I("v_max_f32 v44, v%d, v%d" % (MB, MB + 1))
    for w in range(2, NSLOT): I("v_max_f32 v44, v44, v%d" % (MB + w))
    for w in range(NSLOT):
        I("v_sub_f32 v%d, v%d, v44" % (MB + w, MB + w))
        I("v_mul_f32 v%d, s92, v%d" % (MB + w, MB + w))
        I("v_exp_f32 v%d, v%d" % (MB + w, MB + w))
    I("v_mul_f32 v47, v%d, v%d" % (MB, LBs))
    I("v_mul_f32 v48, v%d, v%d" % (MB, AB))
    for w in range(1, NSLOT):
        I("v_fmac_f32 v47, v%d, v%d" % (MB + w, LBs + w))
        I("v_fmac_f32 v48, v%d, v%d" % (MB + w, AB + w))
    I("s_lshl_b32 s36, s2, 11")
    I("v_add_u32 v46, s36, v46")
    I("global_store_dword v46, v48, s[22:23]")
    I("v_and_b32 v49, 255, v50")
    I("v_cmp_eq_u32 vcc, 0, v49")
    I("v_lshrrev_b32 v49, 8, v50")
    I("v_lshlrev_b32 v49, 3, v49")
    I("s_lshl_b32 s36, s2, 4")
    I("s_add_u32 s36, s36, %d" % WS_STATS)
    I("v_add_u32 v49, s36, v49")
    I("v_mov_b32 v45, v47")
    I("s_and_saveexec_b64 s[38:39], vcc")
    I("s_cbranch_execz L_skip%d" % k)
    I("global_store_dwordx2 v49, v[44:45], s[22:23]")
    A.label("L_skip%d" % k)
    I("s_mov_b64 exec, s[38:39]")
A.label("L_end")
I("s_endpgm")

NP = 4
A.raw("""
.globl combine_kernel
.p2align 8
.type combine_kernel,@function
combine_kernel:""")
I("s_cmp_ge_u32 s2, 128")
I("s_cbranch_scc1 L_end2")
I("s_load_dwordx2 s[4:5], s[0:1], 56")
I("s_load_dwordx2 s[6:7], s[0:1], 72")
I("s_lshr_b32 s8, s2, 1")
I("s_and_b32 s9, s2, 1")
I("s_mul_i32 s10, s8, %d" % (2 * NP))
I("s_add_u32 s10, s10, s9")
I("s_lshl_b32 s11, s10, 3")
I("s_add_u32 s11, s11, %d" % WS_STATS)
I("s_lshl_b32 s12, s10, 10")
I("v_lshlrev_b32 v1, 2, v0")
I("v_add_u32 v1, s12, v1")
I("v_mov_b32 v2, s11")
I("s_waitcnt lgkmcnt(0)")
for s in range(NP):
    I("global_load_dwordx2 v[%d:%d], v2, s[6:7] offset:%d" % (24 + 2 * s, 25 + 2 * s, 16 * s))
for s in range(NP):
    if s and s % 2 == 0: I("v_add_u32 v1, 0x1000, v1")
    I("global_load_dword v%d, v1, s[6:7] offset:%d" % (16 + s, 2048 * (s % 2)))
I("s_mov_b32 s24, 0x%08x" % CEXP)
I("s_waitcnt vmcnt(%d)" % NP)
I("v_mov_b32 v8, v24")
for s in range(1, NP): I("v_max_f32 v8, v8, v%d" % (24 + 2 * s))
for s in range(NP):
    I("v_sub_f32 v%d, v%d, v8" % (24 + 2 * s, 24 + 2 * s))
    I("v_mul_f32 v%d, s24, v%d" % (24 + 2 * s, 24 + 2 * s))
    I("v_exp_f32 v%d, v%d" % (24 + 2 * s, 24 + 2 * s))
I("v_mul_f32 v13, v24, v25")
for s in range(1, NP): I("v_fmac_f32 v13, v%d, v%d" % (24 + 2 * s, 25 + 2 * s))
I("v_rcp_f32 v13, v13")
I("s_waitcnt vmcnt(0)")
I("v_mul_f32 v14, v16, v24")
for s in range(1, NP): I("v_fmac_f32 v14, v%d, v%d" % (16 + s, 24 + 2 * s))
I("v_mul_f32 v14, v14, v13")
I("v_cvt_pk_bf16_f32 v14, v14, v14")
I("s_lshl_b32 s12, s2, 9")
I("v_lshlrev_b32 v1, 1, v0")
I("v_add_u32 v1, s12, v1")
I("global_store_short v1, v14, s[4:5]")
A.label("L_end2")
I("s_endpgm")

A.raw("""
.section .rodata,"a"
.p2align 6
.amdhsa_kernel %s_kernel
  .amdhsa_next_free_vgpr %d
  .amdhsa_next_free_sgpr 102
  .amdhsa_accum_offset %d
  .amdhsa_group_segment_fixed_size 0
  .amdhsa_kernarg_size 80
  .amdhsa_user_sgpr_count 2
  .amdhsa_user_sgpr_kernarg_segment_ptr 1
  .amdhsa_system_sgpr_workgroup_id_x 1
  .amdhsa_float_denorm_mode_32 3
.end_amdhsa_kernel
.p2align 6
.amdhsa_kernel combine_kernel
  .amdhsa_next_free_vgpr 32
  .amdhsa_next_free_sgpr 32
  .amdhsa_accum_offset 32
  .amdhsa_group_segment_fixed_size 0
  .amdhsa_kernarg_size 80
  .amdhsa_user_sgpr_count 2
  .amdhsa_user_sgpr_kernarg_segment_ptr 1
  .amdhsa_system_sgpr_workgroup_id_x 1
  .amdhsa_float_denorm_mode_32 3
.end_amdhsa_kernel
""" % (NAME, NVG, NVG))
open(OUT, "w").write(A.text())
print("wrote", OUT, "nops", A.nops, "lines", len(A.lines), "WAVES", WAVES, "NT", NT, "NVG", NVG, "LDS", LDS_BYTES)
```

```python
import sys, math, struct
sys.path.insert(0, "gen")
from asmlib import Asm

NAME = "standalone__kv_cache_quant_int4_int2_kv_with_per_channel_or_per_token_scales__decode"
OUT = sys.argv[1] if len(sys.argv) > 1 else "cdna_kernels/%s.s" % NAME
opts = dict(a.split("=") for a in sys.argv[2:])
LDFLAGS = " " + opts.get("ldflags", "nt").replace("+", " ")
ONE = opts.get("one", "0") == "1"
STAMP = opts.get("stamp", "0") == "1"
R = int(opts.get("R", "16"))
FUSE = opts.get("fuse", "0") == "1"
SC = " sc1" if FUSE else ""
Q = int(opts.get("Q", "4"))
WAVES = 4 * Q
NT = 4 // Q
NWG = 256
NSLOT = 16
def f32bits(x): return struct.unpack("<I", struct.pack("<f", x))[0]
CEXP = f32bits(math.log2(math.e) / 16.0)
RING = 72
NVG = RING + 4 * R
NVG = max(NVG, 120)
NVG = int(opts.get("vgpr", str((NVG + 7) // 8 * 8)))
LDS_STATS = NSLOT * 2048
LDS_BYTES = max(LDS_STATS + 512, int(opts.get("lds", "0")))
WS_STATS = 8 << 20

A = Asm()
I = A.i

header = """; Kernarg layout: q qk qv k_scales k_zeros v_scales v_zeros out debug ws (8 bytes each)
; split-KV decode attention over int-coded KV cache; kernel 1: per-workgroup partials, kernel 2: combine
; @launch kernel=%s_kernel grid=(%d,1,1) block=(%d,1,1) lds=%d
; @launch kernel=combine_kernel grid=(128,1,1) block=(256,1,1) lds=0
.amdgcn_target "amdgcn-amd-amdhsa--gfx950"
.text
.globl %s_kernel
.p2align 8
.type %s_kernel,@function
%s_kernel:""" % (NAME, NWG, WAVES * 64, LDS_BYTES, NAME, NAME, NAME)
if ONE: header = header.replace("; @launch kernel=combine_kernel", "; no launch of combine_kernel")
if FUSE:
    header = header.replace("; @launch kernel=combine_kernel grid=(128,1,1) block=(256,1,1) lds=0\n", "")
    header = header.replace("; @launch kernel=%s_kernel grid" % NAME, "; @launch grid")
A.raw(header)

def row(r): return RING + 4 * (r % R)
def rowr(r): return "v[%d:%d]" % (row(r), row(r) + 3)
VROW = 2
VL16 = 3
VL8 = 4
VTOK = 5
KZ = 6; KS = 10; Q0 = 14; Q1 = 16
KP = 18; SA = 22; TA = 26; TB = 30; LA = 34; LB = 35; ACC = 36; TMP = 44; P = 52; M_ = 53; L_ = 54
ZSA = 55; ZSB = 56; ZSAn = 57; ZSBn = 58
RAW = 60
VT = 68

def load_row(r):
    if r < 16: srd, so, rr = "s[24:27]", "s31", r
    else: srd, so, rr = "s[96:99]", "s95", r - 16
    if rr:
        I("s_add_u32 s3, %s, 0x%x" % (so, rr * 4096)); so = "s3"
    I("buffer_load_dwordx4 %s, v%d, %s, %s offen%s" % (rowr(r), VROW, srd, so, LDFLAGS))

def small_loads():
    I("s_lshl_b32 s36, s34, 10")
    I("v_add_u32 v%d, s36, v%d" % (VT, VL8))
    I("s_lshl_b32 s36, s34, 9")
    I("v_add_u32 v%d, s36, v%d" % (VT + 1, VTOK))
    I("global_load_dwordx2 v[%d:%d], v%d, s[12:13]" % (RAW, RAW + 1, VT))
    I("global_load_dwordx2 v[%d:%d], v%d, s[12:13] offset:512" % (RAW + 2, RAW + 3, VT))
    I("global_load_dwordx2 v[%d:%d], v%d, s[10:11]" % (RAW + 4, RAW + 5, VT))
    I("global_load_dwordx2 v[%d:%d], v%d, s[10:11] offset:512" % (RAW + 6, RAW + 7, VT))
    I("global_load_ushort v57, v%d, s[16:17]" % (VT + 1))
    I("global_load_ushort v58, v%d, s[14:15]" % (VT + 1))
    I("global_load_ushort v59, v%d, s[16:17] offset:8" % (VT + 1))
    I("global_load_ushort v70, v%d, s[14:15] offset:8" % (VT + 1))

def unpack(g):
    z, s = RAW + 2 * g, RAW + 4 + 2 * g
    I("v_lshlrev_b32 v%d, 16, v%d" % (KZ, z)); I("v_and_b32 v%d, 0xffff0000, v%d" % (KZ + 1, z))
    I("v_lshlrev_b32 v%d, 16, v%d" % (KZ + 2, z + 1)); I("v_and_b32 v%d, 0xffff0000, v%d" % (KZ + 3, z + 1))
    I("v_lshlrev_b32 v%d, 16, v%d" % (KS, s)); I("v_and_b32 v%d, 0xffff0000, v%d" % (KS + 1, s))
    I("v_lshlrev_b32 v%d, 16, v%d" % (KS + 2, s + 1)); I("v_and_b32 v%d, 0xffff0000, v%d" % (KS + 3, s + 1))

I("s_cmp_ge_u32 s2, %d" % NWG)
I("s_cbranch_scc1 L_end")
if STAMP: I("s_memrealtime s[100:101]")
I("s_load_dwordx16 s[4:19], s[0:1], 0")
I("s_load_dwordx4 s[20:23], s[0:1], 64")
I("v_lshrrev_b32 v1, 6, v0")
I("v_readfirstlane_b32 s33, v1")
I("v_and_b32 v1, 63, v0")
I("v_lshlrev_b32 v%d, 4, v1" % VL16)
I("v_lshlrev_b32 v%d, 3, v1" % VL8)
I("s_and_b32 s36, s33, 3")
I("s_lshr_b32 s37, s33, 2")
I("s_lshl_b32 s38, s36, 10")
I("v_add_u32 v%d, s38, v%d" % (VROW, VL16))
I("v_and_b32 v44, 3, v1")
I("v_lshlrev_b32 v44, 7, v44")
I("v_bfe_u32 v45, v1, 4, 1")
I("v_lshl_add_u32 v44, v45, 4, v44")
I("v_bfe_u32 v45, v1, 3, 1")
I("v_lshl_add_u32 v44, v45, 5, v44")
I("v_bfe_u32 v45, v1, 2, 1")
I("v_lshl_add_u32 v44, v45, 6, v44")
I("s_lshl_b32 s38, s36, 1")
I("v_add_u32 v%d, s38, v44" % VTOK)
I("s_mul_i32 s38, s37, %d" % NT)
I("s_lshl_b32 s34, s2, 2")
I("s_add_u32 s34, s34, s38")
I("s_lshl_b32 s28, s38, 2")
I("s_add_u32 s28, s28, s36")
I("s_mov_b32 s93, %d" % NT)
I("s_lshr_b32 s38, s2, 2")
I("s_lshl_b32 s38, s38, 10")
I("v_add_u32 v45, s38, v%d" % VL8)
I("s_mov_b32 s92, 0x%08x" % CEXP)
I("s_lshl_b32 s30, s34, 18")
I("s_mov_b32 s31, s30")
I("s_add_u32 s95, s30, 0x10000")
I("s_waitcnt lgkmcnt(0)")
I("s_and_b32 s7, s7, 0xffff")
I("s_and_b32 s9, s9, 0xffff")
I("s_mov_b32 s24, s6"); I("s_mov_b32 s25, s7")
I("s_mov_b32 s26, 0x10000000")
I("s_mov_b32 s27, 0x00020000")
I("s_mov_b32 s96, s6"); I("s_mov_b32 s97, s7")
I("s_mov_b32 s98, 0x10000000")
I("s_mov_b32 s99, 0x00020000")
I("global_load_dwordx2 v[14:15], v45, s[4:5]")
I("global_load_dwordx2 v[16:17], v45, s[4:5] offset:512")
small_loads()
for r in range(R): load_row(r)

def tree_step(Tr, j, s0, s1):
    T16, Tt, T8a, T8b = Tr, Tr + 1, Tr + 2, Tr + 3
    I("v_permlane32_swap_b32 v%d, v%d" % (s0, s1))
    if j % 2 == 0:
        I("v_add_f32 v%d, v%d, v%d" % (T16, s0, s1)); return
    I("v_add_f32 v%d, v%d, v%d" % (Tt, s0, s1))
    I("v_permlane16_swap_b32 v%d, v%d" % (T16, Tt))
    T8 = T8a if (j >> 2) == 0 else T8b
    if (j >> 1) % 2 == 0:
        I("v_add_f32 v%d, v%d, v%d" % (T8, T16, Tt)); return
    I("v_add_f32 v%d, v%d, v%d" % (Tt, T16, Tt))
    I("v_add_f32_dpp v%d, v%d, v%d row_ror:8 row_mask:0xf bank_mask:0x3" % (T8, T8, T8))
    I("v_add_f32_dpp v%d, v%d, v%d row_ror:8 row_mask:0xf bank_mask:0xc" % (T8, Tt, Tt))
    if (j >> 2) == 0: return
    I("v_add_f32_dpp v%d, v%d, v%d row_half_mirror row_mask:0xf bank_mask:0x5" % (T8a, T8a, T8a))
    I("v_add_f32_dpp v%d, v%d, v%d row_half_mirror row_mask:0xf bank_mask:0xa" % (T8a, T8b, T8b))
    I("v_add_f32_dpp v%d, v%d, v%d quad_perm:[1,0,3,2] row_mask:0xf bank_mask:0xf" % (T8a, T8a, T8a))
    I("v_add_f32_dpp v%d, v%d, v%d quad_perm:[2,3,0,1] row_mask:0xf bank_mask:0xf" % (T8a, T8a, T8a))

A.label("L_task")
I("s_waitcnt vmcnt(%d)" % R)
unpack(0)
I("v_lshl_or_b32 v%d, v58, 16, v57" % ZSA)
I("v_lshl_or_b32 v%d, v70, 16, v59" % ZSB)
for c in range(8): I("v_mov_b32 v%d, 0" % (ACC + c))
I("s_mov_b32 s32, 0")
I("s_mov_b32 s36, 0x11111111")
I("s_mov_b32 s37, 0x11111111")

A.label("L_kloop")
for j in range(8):
    a, b = row(2 * j), row(2 * j + 1)
    I("s_waitcnt vmcnt(%d)" % (R - 2))
    regs = [a + c for c in range(4)] + [b + c for c in range(4)]
    for x in regs: I("v_cvt_f32_i32 v%d, v%d" % (x, x))
    for n, x in enumerate(regs): I("v_sub_f32 v%d, v%d, v%d" % (x, x, KZ + n % 4))
    for x in regs: I("v_cvt_pk_bf16_f32 v%d, 0, v%d" % (x, x))
    for n, x in enumerate(regs): I("v_mul_f32 v%d, v%d, v%d" % (x, x, KS + n % 4))
    I("v_cvt_pk_bf16_f32 v%d, v%d, v%d" % (KP + 0, a, a + 1))
    I("v_cvt_pk_bf16_f32 v%d, v%d, v%d" % (KP + 1, a + 2, a + 3))
    I("v_cvt_pk_bf16_f32 v%d, v%d, v%d" % (KP + 2, b, b + 1))
    I("v_cvt_pk_bf16_f32 v%d, v%d, v%d" % (KP + 3, b + 2, b + 3))
    load_row(2 * j + R); load_row(2 * j + 1 + R)
    I("v_dot2_f32_bf16 v%d, v%d, v%d, 0" % (SA + 0, KP + 0, Q0))
    I("v_dot2_f32_bf16 v%d, v%d, v%d, 0" % (SA + 1, KP + 0, Q1))
    I("v_dot2_f32_bf16 v%d, v%d, v%d, 0" % (SA + 2, KP + 2, Q0))
    I("v_dot2_f32_bf16 v%d, v%d, v%d, 0" % (SA + 3, KP + 2, Q1))
    I("v_dot2_f32_bf16 v%d, v%d, v%d, v%d" % (SA + 0, KP + 1, Q0 + 1, SA + 0))
    I("v_dot2_f32_bf16 v%d, v%d, v%d, v%d" % (SA + 1, KP + 1, Q1 + 1, SA + 1))
    I("v_dot2_f32_bf16 v%d, v%d, v%d, v%d" % (SA + 2, KP + 3, Q0 + 1, SA + 2))
    I("v_dot2_f32_bf16 v%d, v%d, v%d, v%d" % (SA + 3, KP + 3, Q1 + 1, SA + 3))
    tree_step(TA, j, SA + 0, SA + 1)
    tree_step(TB, j, SA + 2, SA + 3)
I("v_cndmask_b32 v%d, v%d, v%d, s[36:37]" % (LA, LA, TA + 2))
I("v_cndmask_b32 v%d, v%d, v%d, s[36:37]" % (LB, LB, TB + 2))
I("s_lshl_b64 s[36:37], s[36:37], 1")
I("s_add_u32 s32, s32, 1")
I("s_mov_b32 s24, s96"); I("s_mov_b32 s25, s97"); I("s_mov_b32 s31, s95")
I("s_add_u32 s95, s95, 0x10000")
I("s_cmp_eq_u32 s32, 3")
I("s_cselect_b32 s96, s8, s96")
I("s_cselect_b32 s97, s9, s97")
I("s_cselect_b32 s95, s30, s95")
I("s_cmp_lg_u32 s32, 2")
I("s_cbranch_scc1 L_nosw")
unpack(1)
A.label("L_nosw")
I("s_cmp_lt_u32 s32, 4")
A.flush()
I("s_cbranch_scc1 L_kloop")

t, t2, eA, eB = TMP, TMP + 1, TMP + 2, TMP + 3
I("v_cvt_pk_bf16_f32 v%d, 0, v%d" % (LA, LA))
I("v_cvt_pk_bf16_f32 v%d, 0, v%d" % (LB, LB))
I("v_max_f32 v%d, v%d, v%d" % (t, LA, LB))
def allreduce32(op, t, t2):
    for ctl in ("quad_perm:[1,0,3,2]", "quad_perm:[2,3,0,1]", "row_half_mirror", "row_mirror"):
        I("%s_dpp v%d, v%d, v%d %s row_mask:0xf bank_mask:0xf" % (op, t, t, t, ctl))
    I("v_mov_b32 v%d, v%d" % (t2, t))
    I("v_permlane16_swap_b32 v%d, v%d" % (t, t2))
    I("%s v%d, v%d, v%d" % (op, t, t, t2))
allreduce32("v_max_f32", t, t2)
I("v_mov_b32 v%d, v%d" % (M_, t))
I("v_sub_f32 v%d, v%d, v%d" % (eA, LA, M_))
I("v_sub_f32 v%d, v%d, v%d" % (eB, LB, M_))
I("v_mul_f32 v%d, s92, v%d" % (eA, eA))
I("v_mul_f32 v%d, s92, v%d" % (eB, eB))
I("v_exp_f32 v%d, v%d" % (eA, eA))
I("v_exp_f32 v%d, v%d" % (eB, eB))
I("v_add_f32 v%d, v%d, v%d" % (t, eA, eB))
I("v_cvt_pk_bf16_f32 v%d, v%d, v%d" % (P, eA, eB))
allreduce32("v_add_f32", t, t2)
I("v_mov_b32 v%d, v%d" % (L_, t))
I("s_mov_b32 s32, 0")
I("s_sub_u32 s93, s93, 1")
if NT > 1:
    I("s_cmp_eq_u32 s93, 0")
    I("s_cbranch_scc1 L_nonext")
    I("s_add_u32 s34, s34, 1")
    I("s_lshl_b32 s30, s34, 18")
    small_loads()
    A.label("L_nonext")

def lane_of(h, j): return h * 32 + (j & 1) * 16 + ((j >> 1) & 1) * 8 + ((j >> 2) & 1) * 4
A.label("L_vloop")
for j in range(8):
    a, b = row(2 * j), row(2 * j + 1)
    sp = 40 + 8 * (j % 2)
    I("v_readlane_b32 s%d, v%d, %d" % (sp + 2, ZSA, lane_of(0, j)))
    I("v_readlane_b32 s%d, v%d, %d" % (sp + 3, ZSB, lane_of(0, j)))
    I("v_readlane_b32 s%d, v%d, %d" % (sp, P, lane_of(0, j)))
    I("v_readlane_b32 s%d, v%d, %d" % (sp + 1, P, lane_of(1, j)))
    I("s_lshl_b32 s%d, s%d, 16" % (sp + 4, sp + 2))
    I("s_and_b32 s%d, s%d, 0xffff0000" % (sp + 5, sp + 2))
    I("s_lshl_b32 s%d, s%d, 16" % (sp + 6, sp + 3))
    I("s_and_b32 s%d, s%d, 0xffff0000" % (sp + 7, sp + 3))
    I("s_waitcnt vmcnt(%d)" % (R - 2))
    regs = [a + c for c in range(4)] + [b + c for c in range(4)]
    for x in regs: I("v_cvt_f32_i32 v%d, v%d" % (x, x))
    for n, x in enumerate(regs): I("v_subrev_f32 v%d, s%d, v%d" % (x, sp + 4 + 2 * (n // 4), x))
    for x in regs: I("v_cvt_pk_bf16_f32 v%d, 0, v%d" % (x, x))
    for n, x in enumerate(regs): I("v_mul_f32 v%d, s%d, v%d" % (x, sp + 5 + 2 * (n // 4), x))
    for c in range(4): I("v_cvt_pk_bf16_f32 v%d, v%d, v%d" % (KP + c, a + c, b + c))
    load_row(2 * j + R); load_row(2 * j + 1 + R)
    for h in range(2):
        for c in range(4):
            I("v_dot2c_f32_bf16 v%d, s%d, v%d" % (ACC + 4 * h + c, sp + h, KP + c))
for x in (P, ZSA, ZSB):
    I("v_mov_b32_dpp v%d, v%d quad_perm:[1,2,3,0] row_mask:0xf bank_mask:0xf" % (x, x))
I("s_add_u32 s32, s32, 1")
I("s_mov_b32 s24, s96"); I("s_mov_b32 s25, s97"); I("s_mov_b32 s26, s98"); I("s_mov_b32 s31, s95")
I("s_add_u32 s95, s95, 0x10000")
I("s_cmp_eq_u32 s32, 3")
I("s_cselect_b32 s96, s6, s96")
I("s_cselect_b32 s97, s7, s97")
I("s_cselect_b32 s95, s30, s95")
I("s_cselect_b32 s36, 1, 0")
I("s_cmp_eq_u32 s93, 0")
I("s_cselect_b32 s36, s36, 0")
I("s_cmp_eq_u32 s36, 1")
I("s_cselect_b32 s98, 0, s98")
I("s_cmp_lt_u32 s32, 4")
A.flush()
I("s_cbranch_scc1 L_vloop")

I("s_lshl_b32 s36, s28, 11")
I("v_add_u32 v44, s36, v%d" % VL16)
I("ds_write_b128 v44, v[%d:%d]" % (ACC, ACC + 3))
I("ds_write_b128 v44, v[%d:%d] offset:1024" % (ACC + 4, ACC + 7))
I("v_lshrrev_b32 v45, 5, v1")
I("v_lshlrev_b32 v45, 7, v45")
I("s_lshl_b32 s36, s28, 2")
I("s_add_u32 s36, s36, %d" % LDS_STATS)
I("v_add_u32 v45, s36, v45")
I("ds_write_b32 v45, v%d" % M_)
I("ds_write_b32 v45, v%d offset:256" % L_)
if NT > 1:
    I("s_add_u32 s28, s28, 4")
    I("s_cmp_lg_u32 s93, 0")
    A.flush()
    I("s_cbranch_scc1 L_task")
if STAMP:
    I("s_memrealtime s[38:39]")
    I("s_getreg_b32 s94, hwreg(HW_REG_XCC_ID)")
    I("s_waitcnt lgkmcnt(0)")
    I("v_mov_b32 v60, s100"); I("v_mov_b32 v61, s28"); I("v_mov_b32 v62, s38"); I("v_mov_b32 v63, s94")
    I("s_mul_i32 s39, s2, 16")
    I("s_add_u32 s39, s39, s33")
    I("s_lshl_b32 s39, s39, 4")
    I("s_add_u32 s39, s39, 0x1000000")
    I("v_mov_b32 v59, s39")
    I("global_store_dwordx4 v59, v[60:63], s[22:23]")
I("s_waitcnt vmcnt(0) lgkmcnt(0)")
I("s_barrier")
nthreads = WAVES * 64
reps = max(1, 512 // nthreads)
if nthreads > 512:
    I("s_cmp_ge_u32 s33, 8")
    I("s_cbranch_scc1 L_end")
MB, LBs, AB = 60, 80, 100
for k in range(reps):
    I("v_add_u32 v50, %d, v0" % (k * nthreads))
    I("v_lshrrev_b32 v45, 8, v50")
    I("v_lshlrev_b32 v45, 7, v45")
    I("v_add_u32 v45, %d, v45" % LDS_STATS)
    for w in range(NSLOT): I("ds_read_b32 v%d, v45 offset:%d" % (MB + w, 4 * w))
    for w in range(NSLOT): I("ds_read_b32 v%d, v45 offset:%d" % (LBs + w, 256 + 4 * w))
    I("v_lshlrev_b32 v46, 2, v50")
    for w in range(NSLOT): I("ds_read_b32 v%d, v46 offset:%d" % (AB + w, w * 2048))
    I("s_waitcnt lgkmcnt(0)")
    I("v_max_f32 v44, v%d, v%d" % (MB, MB + 1))
    for w in range(2, NSLOT): I("v_max_f32 v44, v44, v%d" % (MB + w))
    for w in range(NSLOT):
        I("v_sub_f32 v%d, v%d, v44" % (MB + w, MB + w))
        I("v_mul_f32 v%d, s92, v%d" % (MB + w, MB + w))
        I("v_exp_f32 v%d, v%d" % (MB + w, MB + w))
    I("v_mul_f32 v47, v%d, v%d" % (MB, LBs))
    I("v_mul_f32 v48, v%d, v%d" % (MB, AB))
    for w in range(1, NSLOT):
        I("v_fmac_f32 v47, v%d, v%d" % (MB + w, LBs + w))
        I("v_fmac_f32 v48, v%d, v%d" % (MB + w, AB + w))
    I("s_lshl_b32 s36, s2, 11")
    I("v_add_u32 v46, s36, v46")
    I("global_store_dword v46, v48, s[22:23]" + SC)
    I("v_and_b32 v49, 255, v50")
    I("v_cmp_eq_u32 vcc, 0, v49")
    I("v_lshrrev_b32 v49, 8, v50")
    I("v_lshlrev_b32 v49, 3, v49")
    I("s_lshl_b32 s36, s2, 4")
    I("s_add_u32 s36, s36, %d" % WS_STATS)
    I("v_add_u32 v49, s36, v49")
    I("v_mov_b32 v45, v47")
    I("s_and_saveexec_b64 s[38:39], vcc")
    I("s_cbranch_execz L_skip%d" % k)
    I("global_store_dwordx2 v49, v[44:45], s[22:23]" + SC)
    A.label("L_skip%d" % k)
    I("s_mov_b64 exec, s[38:39]")
if FUSE:
    I("s_waitcnt vmcnt(0)")
    I("s_barrier")
    I("s_cmp_lg_u32 s33, 0")
    I("s_cbranch_scc1 L_wait2")
    I("s_lshr_b32 s36, s2, 2")
    I("s_lshl_b32 s36, s36, 2")
    I("v_mov_b32 v44, s36")
    I("v_mov_b32 v45, 1")
    I("v_mov_b32 v47, %d" % LDS_STATS)
    I("s_mov_b64 exec, 1")
    I("global_atomic_add v46, v44, v45, s[20:21] sc0 sc1")
    I("s_waitcnt vmcnt(0)")
    I("ds_write_b32 v47, v46")
    I("s_mov_b64 exec, -1")
    I("s_waitcnt lgkmcnt(0)")
    A.label("L_wait2")
    I("s_barrier")
    I("v_mov_b32 v47, %d" % LDS_STATS)
    I("ds_read_b32 v46, v47")
    I("s_waitcnt lgkmcnt(0)")
    I("v_readfirstlane_b32 s36, v46")
    I("s_cmp_lg_u32 s36, 3")
    I("s_cbranch_scc1 L_end")
    I("s_lshr_b32 s36, s2, 2")
    I("s_lshl_b32 s37, s36, 13")
    I("s_lshl_b32 s38, s36, 6")
    I("s_add_u32 s38, s38, %d" % WS_STATS)
    for k in range(reps):
        b0 = 60 + 16 * k
        I("v_add_u32 v50, %d, v0" % (k * nthreads))
        I("v_lshlrev_b32 v46, 2, v50")
        I("v_add_u32 v46, s37, v46")
        I("v_add_u32 v47, 0x1000, v46")
        I("v_lshrrev_b32 v49, 8, v50")
        I("v_lshlrev_b32 v49, 3, v49")
        I("v_add_u32 v49, s38, v49")
        for s_ in range(4):
            I("global_load_dwordx2 v[%d:%d], v49, s[22:23] offset:%d sc1" % (b0 + 2 * s_, b0 + 2 * s_ + 1, 16 * s_))
        for s_ in range(4):
            I("global_load_dword v%d, v%d, s[22:23] offset:%d sc1" % (b0 + 8 + s_, 46 + s_ // 2, 2048 * (s_ % 2)))
    for k in range(reps):
        b0 = 60 + 16 * k
        I("s_waitcnt vmcnt(%d)" % (8 * (reps - 1 - k)))
        I("v_max_f32 v44, v%d, v%d" % (b0, b0 + 2))
        I("v_max_f32 v44, v44, v%d" % (b0 + 4))
        I("v_max_f32 v44, v44, v%d" % (b0 + 6))
        for s_ in range(4):
            I("v_sub_f32 v%d, v%d, v44" % (b0 + 2 * s_, b0 + 2 * s_))
            I("v_mul_f32 v%d, s92, v%d" % (b0 + 2 * s_, b0 + 2 * s_))
            I("v_exp_f32 v%d, v%d" % (b0 + 2 * s_, b0 + 2 * s_))
        I("v_mul_f32 v45, v%d, v%d" % (b0, b0 + 1))
        I("v_mul_f32 v48, v%d, v%d" % (b0, b0 + 8))
        for s_ in range(1, 4):
            I("v_fmac_f32 v45, v%d, v%d" % (b0 + 2 * s_, b0 + 2 * s_ + 1))
            I("v_fmac_f32 v48, v%d, v%d" % (b0 + 2 * s_, b0 + 8 + s_))
        I("v_rcp_f32 v45, v45")
        I("v_mul_f32 v48, v48, v45")
        I("v_cvt_pk_bf16_f32 v48, v48, v48")
        I("v_add_u32 v50, %d, v0" % (k * nthreads))
        I("v_lshlrev_b32 v46, 1, v50")
        I("s_lshl_b32 s39, s36, 10")
        I("v_add_u32 v46, s39, v46")
        I("global_store_short v46, v48, s[18:19]")
A.label("L_end")
I("s_endpgm")

NP = 4
if not FUSE:
    A.raw("""
.globl combine_kernel
.p2align 8
.type combine_kernel,@function
combine_kernel:""")
    I("s_cmp_ge_u32 s2, 128")
    I("s_cbranch_scc1 L_end2")
    I("s_load_dwordx2 s[4:5], s[0:1], 56")
    I("s_load_dwordx2 s[6:7], s[0:1], 72")
    I("s_lshr_b32 s8, s2, 1")
    I("s_and_b32 s9, s2, 1")
    I("s_mul_i32 s10, s8, %d" % (2 * NP))
    I("s_add_u32 s10, s10, s9")
    I("s_lshl_b32 s11, s10, 3")
    I("s_add_u32 s11, s11, %d" % WS_STATS)
    I("s_lshl_b32 s12, s10, 10")
    I("v_lshlrev_b32 v1, 2, v0")
    I("v_add_u32 v1, s12, v1")
    I("v_mov_b32 v2, s11")
    I("s_waitcnt lgkmcnt(0)")
    for s in range(NP):
        I("global_load_dwordx2 v[%d:%d], v2, s[6:7] offset:%d" % (24 + 2 * s, 25 + 2 * s, 16 * s))
    for s in range(NP):
        if s and s % 2 == 0: I("v_add_u32 v1, 0x1000, v1")
        I("global_load_dword v%d, v1, s[6:7] offset:%d" % (16 + s, 2048 * (s % 2)))
    I("s_mov_b32 s24, 0x%08x" % CEXP)
    I("s_waitcnt vmcnt(%d)" % NP)
    I("v_mov_b32 v8, v24")
    for s in range(1, NP): I("v_max_f32 v8, v8, v%d" % (24 + 2 * s))
    for s in range(NP):
        I("v_sub_f32 v%d, v%d, v8" % (24 + 2 * s, 24 + 2 * s))
        I("v_mul_f32 v%d, s24, v%d" % (24 + 2 * s, 24 + 2 * s))
        I("v_exp_f32 v%d, v%d" % (24 + 2 * s, 24 + 2 * s))
    I("v_mul_f32 v13, v24, v25")
    for s in range(1, NP): I("v_fmac_f32 v13, v%d, v%d" % (24 + 2 * s, 25 + 2 * s))
    I("v_rcp_f32 v13, v13")
    I("s_waitcnt vmcnt(0)")
    I("v_mul_f32 v14, v16, v24")
    for s in range(1, NP): I("v_fmac_f32 v14, v%d, v%d" % (16 + s, 24 + 2 * s))
    I("v_mul_f32 v14, v14, v13")
    I("v_cvt_pk_bf16_f32 v14, v14, v14")
    I("s_lshl_b32 s12, s2, 9")
    I("v_lshlrev_b32 v1, 1, v0")
    I("v_add_u32 v1, s12, v1")
    I("global_store_short v1, v14, s[4:5]")
    A.label("L_end2")
    I("s_endpgm")

A.raw("""
.section .rodata,"a"
.p2align 6
.amdhsa_kernel %s_kernel
  .amdhsa_next_free_vgpr %d
  .amdhsa_next_free_sgpr 102
  .amdhsa_accum_offset %d
  .amdhsa_group_segment_fixed_size 0
  .amdhsa_kernarg_size 80
  .amdhsa_user_sgpr_count 2
  .amdhsa_user_sgpr_kernarg_segment_ptr 1
  .amdhsa_system_sgpr_workgroup_id_x 1
  .amdhsa_float_denorm_mode_32 3
.end_amdhsa_kernel
.p2align 6
.amdhsa_kernel combine_kernel
  .amdhsa_next_free_vgpr 32
  .amdhsa_next_free_sgpr 32
  .amdhsa_accum_offset 32
  .amdhsa_group_segment_fixed_size 0
  .amdhsa_kernarg_size 80
  .amdhsa_user_sgpr_count 2
  .amdhsa_user_sgpr_kernarg_segment_ptr 1
  .amdhsa_system_sgpr_workgroup_id_x 1
  .amdhsa_float_denorm_mode_32 3
.end_amdhsa_kernel
""" % (NAME, NVG, NVG))
txt = A.text()
if FUSE:
    a = txt.index(".p2align 6\n.amdhsa_kernel combine_kernel"); b = txt.index(".end_amdhsa_kernel", a) + len(".end_amdhsa_kernel")
    txt = txt[:a] + txt[b:]
open(OUT, "w").write(txt)
print("wrote", OUT, "nops", A.nops, "lines", len(A.lines), "WAVES", WAVES, "NT", NT, "NVG", NVG, "LDS", LDS_BYTES)
```

```python
import sys, math, struct
sys.path.insert(0, "gen")
from asmlib import Asm

NAME = "standalone__kv_cache_quant_int4_int2_kv_with_per_channel_or_per_token_scales__decode"
OUT = sys.argv[1] if len(sys.argv) > 1 else "cdna_kernels/%s.s" % NAME
opts = dict(a.split("=") for a in sys.argv[2:])
LDFLAGS = " " + opts.get("ldflags", "nt").replace("+", " ")
STAMP2 = opts.get("stamp", "0") == "2"
R = int(opts.get("R", "16"))
NWP = int(opts.get("NWP", "4"))
nA = int(opts.get("nA", "10")); nB = int(opts.get("nB", "6")); nC = int(opts.get("nC", "12"))
assert 4 * nA + 2 * nB + nC == 64 and nA + nB + nC >= NWP
NTASK = nA + nB + nC
NWG = 64 * NWP
LOGNWP = int(math.log2(NWP))
WAVES = 4
def f32bits(x): return struct.unpack("<I", struct.pack("<f", x))[0]
CEXP = f32bits(math.log2(math.e) / 16.0)
RING = 72
NVG = RING + 4 * R
NVG = int(opts.get("vgpr", str((NVG + 7) // 8 * 8)))
LDS_STATS = 4 * 2048
LDS_FLAG = LDS_STATS + 512
LDS_BYTES = max(LDS_FLAG + 64, int(opts.get("lds", "0")))
WS_STATS = 8 << 20

A = Asm()
I = A.i
header = """; Kernarg layout: q qk qv k_scales k_zeros v_scales v_zeros out debug ws (8 bytes each)
; split-KV decode attention over an int-coded KV cache. One workgroup = 4 waves that stream interleaved token rows.
; Each (batch, kv-head) has NWP workgroups sharing a task queue (counter in d_debug); the last one to finish combines.
; @launch grid=(%d,1,1) block=(%d,1,1) lds=%d
.amdgcn_target "amdgcn-amd-amdhsa--gfx950"
.text
.globl %s_kernel
.p2align 8
.type %s_kernel,@function
%s_kernel:""" % (NWG, (WAVES + 1) * 64, LDS_BYTES, NAME, NAME, NAME)
A.raw(header)

def row(r): return RING + 4 * (r % R)
def rowr(r): return "v[%d:%d]" % (row(r), row(r) + 3)
VROW = 2; VL16 = 3; VL8 = 4; VTOK = 5
KZ = 6; KS = 10; Q0 = 14; Q1 = 16
KP = 18; SA = 22; TA = 26; TB = 30; LA = 34; LB = 35; ACC = 36; TMP = 44; P = 52; M_ = 53; L_ = 54
ZSA = 55; ZSB = 56
RAW = 60
VT = 68
CLM = 51

def load_row(r):
    if r < 16: srd, so, rr = "s[24:27]", "s31", r
    else: srd, so, rr = "s[96:99]", "s95", r - 16
    if rr:
        I("s_add_u32 s3, %s, 0x%x" % (so, rr * 4096)); so = "s3"
    I("buffer_load_dwordx4 %s, v%d, %s, %s offen%s" % (rowr(r), VROW, srd, so, LDFLAGS))

SEG = 64 // NWP
pA = int(opts.get("pA", "2")); pB = int(opts.get("pB", "2")); pC = int(opts.get("pC", "4"))
INTER = opts.get("inter", "1") == "1"
if INTER:
    assert 4 * pA + 2 * pB + pC == SEG
    NTASK = NWP * (pA + pB + pC)
def decode_task():
    if INTER:
        a_, b_, c_ = pA, pB, pC
        I("s_cmp_ge_u32 s38, %d" % NTASK)
        I("s_cselect_b32 s3, 1, 0")
        I("s_and_b32 s35, s38, %d" % (NWP - 1))
        I("s_lshr_b32 s38, s38, %d" % LOGNWP)
    else:
        a_, b_, c_ = nA, nB, nC
        I("s_cmp_ge_u32 s38, %d" % NTASK)
        I("s_cselect_b32 s3, 1, 0")
        I("s_mov_b32 s35, 0")
    I("s_lshl_b32 s94, s38, 2")
    I("s_mov_b32 s93, 4")
    I("s_lshl_b32 s39, s38, 1")
    I("s_add_u32 s39, s39, %d" % (2 * a_))
    I("s_cmp_ge_u32 s38, %d" % a_)
    I("s_cselect_b32 s94, s39, s94")
    I("s_cselect_b32 s93, 2, s93")
    I("s_add_u32 s39, s38, %d" % (3 * a_ + b_))
    I("s_cmp_ge_u32 s38, %d" % (a_ + b_))
    I("s_cselect_b32 s94, s39, s94")
    I("s_cselect_b32 s93, 1, s93")
    I("s_mul_i32 s35, s35, %d" % SEG)
    I("s_add_u32 s94, s94, s35")
    I("s_cmp_eq_u32 s3, 1")
    I("s_cselect_b32 s93, 0, s93")
    I("s_cselect_b32 s94, 0, s94")
    I("s_lshl_b32 s35, s28, 6")
    I("s_add_u32 s94, s35, s94")
    I("s_lshl_b32 s35, s94, 16")

def small_loads():
    I("s_lshr_b32 s38, s94, 1")
    I("s_lshl_b32 s38, s38, 9")
    I("v_add_u32 v%d, s38, v%d" % (VT, VL8))
    I("s_cmp_eq_u32 s93, 4")
    I("s_cselect_b32 s38, 0x200, 0")
    I("v_add_u32 v%d, s38, v%d" % (VT + 1, VT))
    I("global_load_dwordx2 v[%d:%d], v%d, s[12:13]" % (RAW, RAW + 1, VT))
    I("global_load_dwordx2 v[%d:%d], v%d, s[12:13]" % (RAW + 2, RAW + 3, VT + 1))
    I("global_load_dwordx2 v[%d:%d], v%d, s[10:11]" % (RAW + 4, RAW + 5, VT))
    I("global_load_dwordx2 v[%d:%d], v%d, s[10:11]" % (RAW + 6, RAW + 7, VT + 1))
    I("s_lshl_b32 s38, s94, 7")
    I("v_add_u32 v%d, s38, v%d" % (VT, VTOK))
    I("v_min_u32 v%d, 0x7fff6, v%d" % (VT, VT))
    I("global_load_ushort v57, v%d, s[16:17]" % VT)
    I("global_load_ushort v58, v%d, s[14:15]" % VT)
    I("global_load_ushort v59, v%d, s[16:17] offset:8" % VT)
    I("global_load_ushort v70, v%d, s[14:15] offset:8" % VT)

def unpack(g):
    z, s = RAW + 2 * g, RAW + 4 + 2 * g
    I("v_lshlrev_b32 v%d, 16, v%d" % (KZ, z)); I("v_and_b32 v%d, 0xffff0000, v%d" % (KZ + 1, z))
    I("v_lshlrev_b32 v%d, 16, v%d" % (KZ + 2, z + 1)); I("v_and_b32 v%d, 0xffff0000, v%d" % (KZ + 3, z + 1))
    I("v_lshlrev_b32 v%d, 16, v%d" % (KS, s)); I("v_and_b32 v%d, 0xffff0000, v%d" % (KS + 1, s))
    I("v_lshlrev_b32 v%d, 16, v%d" % (KS + 2, s + 1)); I("v_and_b32 v%d, 0xffff0000, v%d" % (KS + 3, s + 1))

def stamp2():
    if not STAMP2: return
    I("s_memrealtime s[38:39]")
    I("s_waitcnt lgkmcnt(0)")
    I("v_mov_b32 v69, s38")
    I("global_store_dword v71, v69, s[22:23]")
    I("v_add_u32 v71, 4, v71")

I("s_cmp_ge_u32 s2, %d" % NWG)
I("s_cbranch_scc1 L_end")
I("s_load_dwordx16 s[4:19], s[0:1], 0")
I("s_load_dwordx4 s[20:23], s[0:1], 64")
I("v_lshrrev_b32 v1, 6, v0")
I("v_readfirstlane_b32 s33, v1")
I("v_and_b32 v1, 63, v0")
I("v_lshlrev_b32 v%d, 4, v1" % VL16)
I("v_lshlrev_b32 v%d, 3, v1" % VL8)
I("s_lshl_b32 s38, s33, 10")
I("v_add_u32 v%d, s38, v%d" % (VROW, VL16))
I("v_and_b32 v44, 3, v1")
I("v_lshlrev_b32 v44, 7, v44")
I("v_bfe_u32 v45, v1, 4, 1")
I("v_lshl_add_u32 v44, v45, 4, v44")
I("v_bfe_u32 v45, v1, 3, 1")
I("v_lshl_add_u32 v44, v45, 5, v44")
I("v_bfe_u32 v45, v1, 2, 1")
I("v_lshl_add_u32 v44, v45, 6, v44")
I("s_lshl_b32 s38, s33, 1")
I("v_add_u32 v%d, s38, v44" % VTOK)
I("s_lshr_b32 s28, s2, %d" % LOGNWP)
I("s_and_b32 s38, s2, %d" % (NWP - 1))
I("s_mov_b32 s100, s38")
decode_task()
I("s_lshl_b32 s38, s28, 10")
I("v_add_u32 v45, s38, v%d" % VL8)
I("s_mov_b32 s92, 0x%08x" % CEXP)
I("s_mov_b32 s29, 0")
I("s_lshl_b32 s38, s28, 2")
I("v_mov_b32 v49, s38")
I("v_mov_b32 v50, 1")
I("v_mov_b32 v%d, 0xff800000" % M_)
I("v_mov_b32 v%d, 0" % L_)
for c in range(8): I("v_mov_b32 v%d, 0" % (ACC + c))
I("s_waitcnt lgkmcnt(0)")
I("s_cmp_eq_u32 s33, 4")
I("s_cbranch_scc1 L_helper")
I("s_and_b32 s7, s7, 0xffff")
I("s_and_b32 s9, s9, 0xffff")
I("s_mov_b32 s24, s6"); I("s_mov_b32 s25, s7")
I("s_mov_b32 s26, 0x10000000")
I("s_mov_b32 s27, 0x00020000")
I("s_mov_b32 s96, s6"); I("s_mov_b32 s97, s7")
I("s_mov_b32 s98, 0x10000000")
I("s_mov_b32 s99, 0x00020000")
I("global_load_dwordx2 v[14:15], v45, s[4:5]")
I("global_load_dwordx2 v[16:17], v45, s[4:5] offset:512")
small_loads()
I("s_mov_b32 s31, s35")
for r in range(R): load_row(r)
if STAMP2:
    I("s_mul_i32 s39, s2, 4")
    I("s_add_u32 s39, s39, s33")
    I("s_lshl_b32 s39, s39, 9")
    I("s_add_u32 s39, s39, 0x1000000")
    I("v_mov_b32 v71, s39")
    I("s_getreg_b32 s38, hwreg(HW_REG_XCC_ID)")
    I("v_mov_b32 v69, s38")
    I("global_store_dword v71, v69, s[22:23]")
    I("v_add_u32 v71, 4, v71")
    stamp2()

def tree_step(Tr, j, s0, s1):
    T16, Tt, T8a, T8b = Tr, Tr + 1, Tr + 2, Tr + 3
    I("v_permlane32_swap_b32 v%d, v%d" % (s0, s1))
    if j % 2 == 0:
        I("v_add_f32 v%d, v%d, v%d" % (T16, s0, s1)); return
    I("v_add_f32 v%d, v%d, v%d" % (Tt, s0, s1))
    I("v_permlane16_swap_b32 v%d, v%d" % (T16, Tt))
    T8 = T8a if (j >> 2) == 0 else T8b
    if (j >> 1) % 2 == 0:
        I("v_add_f32 v%d, v%d, v%d" % (T8, T16, Tt)); return
    I("v_add_f32 v%d, v%d, v%d" % (Tt, T16, Tt))
    I("v_add_f32_dpp v%d, v%d, v%d row_ror:8 row_mask:0xf bank_mask:0x3" % (T8, T8, T8))
    I("v_add_f32_dpp v%d, v%d, v%d row_ror:8 row_mask:0xf bank_mask:0xc" % (T8, Tt, Tt))
    if (j >> 2) == 0: return
    I("v_add_f32_dpp v%d, v%d, v%d row_half_mirror row_mask:0xf bank_mask:0x5" % (T8a, T8a, T8a))
    I("v_add_f32_dpp v%d, v%d, v%d row_half_mirror row_mask:0xf bank_mask:0xa" % (T8a, T8b, T8b))
    I("v_add_f32_dpp v%d, v%d, v%d quad_perm:[1,0,3,2] row_mask:0xf bank_mask:0xf" % (T8a, T8a, T8a))
    I("v_add_f32_dpp v%d, v%d, v%d quad_perm:[2,3,0,1] row_mask:0xf bank_mask:0xf" % (T8a, T8a, T8a))

A.label("L_task")
I("s_mov_b32 s30, s35")
I("s_mov_b32 s34, s93")
I("s_waitcnt vmcnt(%d)" % R)
unpack(0)
I("v_lshl_or_b32 v%d, v58, 16, v57" % ZSA)
I("v_lshl_or_b32 v%d, v70, 16, v59" % ZSB)
I("v_mov_b32 v%d, 0xff800000" % LA)
I("v_mov_b32 v%d, 0xff800000" % LB)
I("s_mov_b32 s32, 0")
I("s_mov_b32 s36, 0x11111111")
I("s_mov_b32 s37, 0x11111111")
A.label("L_kloop")
I("s_lshl_b32 s31, s32, 16")
I("s_add_u32 s31, s31, s30")
I("s_mov_b32 s24, s6"); I("s_mov_b32 s25, s7"); I("s_mov_b32 s26, 0x10000000")
I("s_add_u32 s95, s31, 0x10000")
I("s_add_u32 s32, s32, 1")
I("s_cmp_lt_u32 s32, s34")
I("s_cselect_b32 s96, s6, s8")
I("s_cselect_b32 s97, s7, s9")
I("s_cselect_b32 s95, s95, s30")
I("s_mov_b32 s98, 0x10000000")
for j in range(8):
    a, b = row(2 * j), row(2 * j + 1)
    I("s_waitcnt vmcnt(%d)" % (R - 2))
    regs = [a + c for c in range(4)] + [b + c for c in range(4)]
    for x in regs: I("v_cvt_f32_i32 v%d, v%d" % (x, x))
    for n, x in enumerate(regs): I("v_sub_f32 v%d, v%d, v%d" % (x, x, KZ + n % 4))
    for x in regs: I("v_cvt_pk_bf16_f32 v%d, 0, v%d" % (x, x))
    for n, x in enumerate(regs): I("v_mul_f32 v%d, v%d, v%d" % (x, x, KS + n % 4))
    I("v_cvt_pk_bf16_f32 v%d, v%d, v%d" % (KP + 0, a, a + 1))
    I("v_cvt_pk_bf16_f32 v%d, v%d, v%d" % (KP + 1, a + 2, a + 3))
    I("v_cvt_pk_bf16_f32 v%d, v%d, v%d" % (KP + 2, b, b + 1))
    I("v_cvt_pk_bf16_f32 v%d, v%d, v%d" % (KP + 3, b + 2, b + 3))
    load_row(2 * j + R); load_row(2 * j + 1 + R)
    I("v_dot2_f32_bf16 v%d, v%d, v%d, 0" % (SA + 0, KP + 0, Q0))
    I("v_dot2_f32_bf16 v%d, v%d, v%d, 0" % (SA + 1, KP + 0, Q1))
    I("v_dot2_f32_bf16 v%d, v%d, v%d, 0" % (SA + 2, KP + 2, Q0))
    I("v_dot2_f32_bf16 v%d, v%d, v%d, 0" % (SA + 3, KP + 2, Q1))
    I("v_dot2_f32_bf16 v%d, v%d, v%d, v%d" % (SA + 0, KP + 1, Q0 + 1, SA + 0))
    I("v_dot2_f32_bf16 v%d, v%d, v%d, v%d" % (SA + 1, KP + 1, Q1 + 1, SA + 1))
    I("v_dot2_f32_bf16 v%d, v%d, v%d, v%d" % (SA + 2, KP + 3, Q0 + 1, SA + 2))
    I("v_dot2_f32_bf16 v%d, v%d, v%d, v%d" % (SA + 3, KP + 3, Q1 + 1, SA + 3))
    tree_step(TA, j, SA + 0, SA + 1)
    tree_step(TB, j, SA + 2, SA + 3)
I("v_cndmask_b32 v%d, v%d, v%d, s[36:37]" % (LA, LA, TA + 2))
I("v_cndmask_b32 v%d, v%d, v%d, s[36:37]" % (LB, LB, TB + 2))
I("s_lshl_b64 s[36:37], s[36:37], 1")
stamp2()
I("s_cmp_lg_u32 s32, 2")
I("s_cbranch_scc1 L_nosw")
unpack(1)
A.label("L_nosw")
I("s_cmp_lt_u32 s32, s34")
A.flush()
I("s_cbranch_scc1 L_kloop")

I("s_lshl_b32 s38, s29, 2")
I("s_add_u32 s38, s38, %d" % LDS_FLAG)
I("v_mov_b32 v%d, s38" % VT)
I("s_xor_b32 s29, s29, 1")
I("s_barrier")
I("ds_read_b32 v%d, v%d" % (VT + 1, VT))

t, t2, eA, eB, sc = TMP, TMP + 1, TMP + 2, TMP + 3, TMP + 4
I("v_cvt_pk_bf16_f32 v%d, 0, v%d" % (LA, LA))
I("v_cvt_pk_bf16_f32 v%d, 0, v%d" % (LB, LB))
I("v_max3_f32 v%d, v%d, v%d, v%d" % (t, LA, LB, M_))
def allreduce32(op, t, t2):
    for ctl in ("quad_perm:[1,0,3,2]", "quad_perm:[2,3,0,1]", "row_half_mirror", "row_mirror"):
        I("%s_dpp v%d, v%d, v%d %s row_mask:0xf bank_mask:0xf" % (op, t, t, t, ctl))
    I("v_mov_b32 v%d, v%d" % (t2, t))
    I("v_permlane16_swap_b32 v%d, v%d" % (t, t2))
    I("%s v%d, v%d, v%d" % (op, t, t, t2))
allreduce32("v_max_f32", t, t2)
I("v_sub_f32 v%d, v%d, v%d" % (sc, M_, t))
I("v_mov_b32 v%d, v%d" % (M_, t))
I("v_sub_f32 v%d, v%d, v%d" % (eA, LA, M_))
I("v_sub_f32 v%d, v%d, v%d" % (eB, LB, M_))
I("v_mul_f32 v%d, s92, v%d" % (sc, sc))
I("v_mul_f32 v%d, s92, v%d" % (eA, eA))
I("v_mul_f32 v%d, s92, v%d" % (eB, eB))
I("v_exp_f32 v%d, v%d" % (sc, sc))
I("v_exp_f32 v%d, v%d" % (eA, eA))
I("v_exp_f32 v%d, v%d" % (eB, eB))
I("v_add_f32 v%d, v%d, v%d" % (t, eA, eB))
I("v_cvt_pk_bf16_f32 v%d, v%d, v%d" % (P, eA, eB))
I("v_readlane_b32 s40, v%d, 0" % sc)
I("v_readlane_b32 s41, v%d, 32" % sc)
allreduce32("v_add_f32", t, t2)
I("v_fma_f32 v%d, v%d, v%d, v%d" % (L_, L_, sc, t))
for h in range(2):
    for c in range(4): I("v_mul_f32 v%d, s%d, v%d" % (ACC + 4 * h + c, 40 + h, ACC + 4 * h + c))
I("s_waitcnt lgkmcnt(0)")
I("v_readfirstlane_b32 s38, v%d" % (VT + 1))
decode_task()
I("s_cmp_eq_u32 s93, 0")
I("s_cbranch_scc1 L_nonext")
small_loads()
A.label("L_nonext")
I("s_mov_b32 s32, 0")

def lane_of(h, j): return h * 32 + (j & 1) * 16 + ((j >> 1) & 1) * 8 + ((j >> 2) & 1) * 4
A.label("L_vloop")
I("s_lshl_b32 s31, s32, 16")
I("s_add_u32 s31, s31, s30")
I("s_mov_b32 s24, s8"); I("s_mov_b32 s25, s9"); I("s_mov_b32 s26, 0x10000000")
I("s_add_u32 s95, s31, 0x10000")
I("s_cmp_eq_u32 s93, 0")
I("s_cselect_b32 s39, 0, 0x10000000")
I("s_add_u32 s32, s32, 1")
I("s_cmp_lt_u32 s32, s34")
I("s_cselect_b32 s96, s8, s6")
I("s_cselect_b32 s97, s9, s7")
I("s_cselect_b32 s95, s95, s35")
I("s_cselect_b32 s98, 0x10000000, s39")
for j in range(8):
    a, b = row(2 * j), row(2 * j + 1)
    sp = 40 + 8 * (j % 2)
    I("v_readlane_b32 s%d, v%d, %d" % (sp + 2, ZSA, lane_of(0, j)))
    I("v_readlane_b32 s%d, v%d, %d" % (sp + 3, ZSB, lane_of(0, j)))
    I("v_readlane_b32 s%d, v%d, %d" % (sp, P, lane_of(0, j)))
    I("v_readlane_b32 s%d, v%d, %d" % (sp + 1, P, lane_of(1, j)))
    I("s_lshl_b32 s%d, s%d, 16" % (sp + 4, sp + 2))
    I("s_and_b32 s%d, s%d, 0xffff0000" % (sp + 5, sp + 2))
    I("s_lshl_b32 s%d, s%d, 16" % (sp + 6, sp + 3))
    I("s_and_b32 s%d, s%d, 0xffff0000" % (sp + 7, sp + 3))
    I("s_waitcnt vmcnt(%d)" % (R - 2))
    regs = [a + c for c in range(4)] + [b + c for c in range(4)]
    for x in regs: I("v_cvt_f32_i32 v%d, v%d" % (x, x))
    for n, x in enumerate(regs): I("v_subrev_f32 v%d, s%d, v%d" % (x, sp + 4 + 2 * (n // 4), x))
    for x in regs: I("v_cvt_pk_bf16_f32 v%d, 0, v%d" % (x, x))
    for n, x in enumerate(regs): I("v_mul_f32 v%d, s%d, v%d" % (x, sp + 5 + 2 * (n // 4), x))
    for c in range(4): I("v_cvt_pk_bf16_f32 v%d, v%d, v%d" % (KP + c, a + c, b + c))
    load_row(2 * j + R); load_row(2 * j + 1 + R)
    for h in range(2):
        for c in range(4):
            I("v_dot2c_f32_bf16 v%d, s%d, v%d" % (ACC + 4 * h + c, sp + h, KP + c))
for x in (P, ZSA, ZSB):
    I("v_mov_b32_dpp v%d, v%d quad_perm:[1,2,3,0] row_mask:0xf bank_mask:0xf" % (x, x))
stamp2()
I("s_cmp_lt_u32 s32, s34")
A.flush()
I("s_cbranch_scc1 L_vloop")
I("s_cmp_lg_u32 s93, 0")
I("s_cbranch_scc1 L_task")

if STAMP2:
    I("v_mov_b32 v69, -1")
    I("global_store_dword v71, v69, s[22:23]")
I("s_lshl_b32 s36, s33, 11")
I("v_add_u32 v44, s36, v%d" % VL16)
I("ds_write_b128 v44, v[%d:%d]" % (ACC, ACC + 3))
I("ds_write_b128 v44, v[%d:%d] offset:1024" % (ACC + 4, ACC + 7))
I("v_lshrrev_b32 v45, 5, v1")
I("v_lshlrev_b32 v45, 7, v45")
I("s_lshl_b32 s36, s33, 2")
I("s_add_u32 s36, s36, %d" % LDS_STATS)
I("v_add_u32 v45, s36, v45")
I("ds_write_b32 v45, v%d" % M_)
I("ds_write_b32 v45, v%d offset:256" % L_)
I("s_waitcnt vmcnt(0) lgkmcnt(0)")
I("s_barrier")
I("v_lshlrev_b32 v46, 2, v0")
I("v_mov_b32 v45, %d" % LDS_STATS)
for h in range(2):
    I("ds_read_b128 v[%d:%d], v45 offset:%d" % (60 + 12 * h, 63 + 12 * h, 128 * h))
    I("ds_read_b128 v[%d:%d], v45 offset:%d" % (64 + 12 * h, 67 + 12 * h, 256 + 128 * h))
    for w in range(4): I("ds_read_b32 v%d, v46 offset:%d" % (68 + 12 * h + w, w * 2048 + 1024 * h))
I("s_waitcnt lgkmcnt(0)")
I("s_lshl_b32 s36, s2, 11")
I("v_add_u32 v47, s36, v46")
for h in range(2):
    m0, l0, a0 = 60 + 12 * h, 64 + 12 * h, 68 + 12 * h
    mm, ll, oo = 84 + 4 * h, 85 + 4 * h, 86 + 4 * h
    I("v_max3_f32 v%d, v%d, v%d, v%d" % (mm, m0, m0 + 1, m0 + 2))
    I("v_max_f32 v%d, v%d, v%d" % (mm, mm, m0 + 3))
    for w in range(4):
        I("v_sub_f32 v%d, v%d, v%d" % (m0 + w, m0 + w, mm))
        I("v_mul_f32 v%d, s92, v%d" % (m0 + w, m0 + w))
        I("v_exp_f32 v%d, v%d" % (m0 + w, m0 + w))
    I("v_mul_f32 v%d, v%d, v%d" % (ll, m0, l0))
    I("v_mul_f32 v%d, v%d, v%d" % (oo, m0, a0))
    for w in range(1, 4):
        I("v_fmac_f32 v%d, v%d, v%d" % (ll, m0 + w, l0 + w))
        I("v_fmac_f32 v%d, v%d, v%d" % (oo, m0 + w, a0 + w))
    I("global_store_dword v47, v%d, s[22:23] offset:%d sc1" % (oo, 1024 * h))
I("s_cmp_lg_u32 s33, 0")
I("s_cbranch_scc1 L_nostat")
I("s_lshl_b32 s36, s2, 4")
I("s_add_u32 s36, s36, %d" % WS_STATS)
I("v_mov_b32 v48, s36")
I("s_mov_b64 exec, 1")
I("global_store_dwordx2 v48, v[84:85], s[22:23] sc1")
I("global_store_dwordx2 v48, v[88:89], s[22:23] offset:8 sc1")
I("s_mov_b64 exec, -1")
A.label("L_nostat")
I("s_waitcnt vmcnt(0)")
I("s_barrier")
I("v_mov_b32 v47, %d" % (LDS_FLAG + 16))
I("s_cmp_lg_u32 s33, 0")
I("s_cbranch_scc1 L_wait2")
I("v_mov_b32 v45, 0x1000000")
I("s_mov_b64 exec, 1")
I("global_atomic_add v48, v49, v45, s[20:21] sc0 sc1")
I("s_waitcnt vmcnt(0)")
I("ds_write_b32 v47, v48")
I("s_mov_b64 exec, -1")
I("s_waitcnt lgkmcnt(0)")
A.label("L_wait2")
I("s_barrier")
I("ds_read_b32 v48, v47")
I("s_waitcnt lgkmcnt(0)")
I("v_readfirstlane_b32 s36, v48")
I("s_lshr_b32 s36, s36, 24")
I("s_cmp_lg_u32 s36, %d" % (NWP - 1))
I("s_cbranch_scc1 L_end")
I("s_lshl_b32 s37, s28, %d" % (11 + LOGNWP))
I("v_add_u32 v47, s37, v46")
I("s_lshl_b32 s38, s28, %d" % (4 + LOGNWP))
I("s_add_u32 s38, s38, %d" % WS_STATS)
I("v_mov_b32 v48, s38")
SB = 60; OB = 60 + 4 * NWP
for s_ in range(NWP):
    I("global_load_dwordx4 v[%d:%d], v48, s[22:23] offset:%d sc1" % (SB + 4 * s_, SB + 4 * s_ + 3, 16 * s_))
for s_ in range(NWP):
    if s_ and s_ % 2 == 0: I("v_add_u32 v47, 0x1000, v47")
    for h in range(2):
        I("global_load_dword v%d, v47, s[22:23] offset:%d sc1" % (OB + 2 * s_ + h, 2048 * (s_ % 2) + 1024 * h))
I("s_waitcnt vmcnt(0)")
I("s_lshl_b32 s39, s28, 10")
I("v_lshlrev_b32 v46, 1, v0")
I("v_add_u32 v46, s39, v46")
for h in range(2):
    I("v_mov_b32 v44, v%d" % (SB + 2 * h))
    for s_ in range(1, NWP): I("v_max_f32 v44, v44, v%d" % (SB + 4 * s_ + 2 * h))
    for s_ in range(NWP):
        r_ = SB + 4 * s_ + 2 * h
        I("v_sub_f32 v%d, v%d, v44" % (r_, r_))
        I("v_mul_f32 v%d, s92, v%d" % (r_, r_))
        I("v_exp_f32 v%d, v%d" % (r_, r_))
    I("v_mul_f32 v45, v%d, v%d" % (SB + 2 * h, SB + 2 * h + 1))
    I("v_mul_f32 v48, v%d, v%d" % (SB + 2 * h, OB + h))
    for s_ in range(1, NWP):
        I("v_fmac_f32 v45, v%d, v%d" % (SB + 4 * s_ + 2 * h, SB + 4 * s_ + 2 * h + 1))
        I("v_fmac_f32 v48, v%d, v%d" % (SB + 4 * s_ + 2 * h, OB + 2 * s_ + h))
    I("v_rcp_f32 v45, v45")
    I("v_mul_f32 v48, v48, v45")
    I("v_cvt_pk_bf16_f32 v48, v48, v48")
    I("global_store_short v46, v48, s[18:19] offset:%d" % (512 * h))
I("s_branch L_end")
A.label("L_helper")
assert NWP == 4 and INTER
NPOS = pA + pB + pC
PS = int(opts.get("PS", str(pA + pB)))
NST = NPOS - PS
CNT_BASE = 12 << 20
I("s_mov_b64 exec, 1")
I("s_and_b32 s40, s2, 3")
I("s_lshl_b32 s47, s28, 8")
I("s_add_u32 s47, s47, %d" % CNT_BASE)
I("v_mov_b32 v48, s47")
I("s_cmp_lg_u32 s40, 0")
I("s_cbranch_scc1 L_hnoinit")
I("v_mov_b32 v47, 0")
I("global_store_dword v48, v47, s[22:23] sc1")
I("s_waitcnt vmcnt(0)")
I("v_mov_b32 v47, 1")
I("global_atomic_or v49, v47, s[20:21] sc1")
A.label("L_hnoinit")
def publish():
    I("s_lshl_b32 s39, s29, 2")
    I("s_add_u32 s39, s39, %d" % LDS_FLAG)
    I("v_mov_b32 v%d, s39" % VT)
    I("v_mov_b32 v%d, s38" % (VT + 1))
    I("s_xor_b32 s29, s29, 1")
    I("ds_write_b32 v%d, v%d" % (VT, VT + 1))
    I("s_waitcnt lgkmcnt(0)")
    I("s_barrier")
if PS > 1:
    I("s_mov_b32 s38, s40")
    A.label("L_hstatic")
    I("s_add_u32 s38, s38, 4")
    publish()
    I("s_cmp_lt_u32 s38, %d" % (4 * (PS - 1)))
    A.flush()
    I("s_cbranch_scc1 L_hstatic")
A.label("L_hpoll")
I("global_load_dword v47, v49, s[20:21] sc1")
I("s_waitcnt vmcnt(0)")
I("v_readfirstlane_b32 s41, v47")
I("s_and_b32 s41, s41, 1")
I("s_cmp_eq_u32 s41, 1")
I("s_cbranch_scc1 L_hloop")
I("s_sleep 8")
I("s_branch L_hpoll")
A.label("L_hloop")
I("s_mul_i32 s42, s40, 6")
I("s_lshl_b32 s43, 1, s42")
I("v_mov_b32 v50, s43")
I("global_atomic_add v%d, v48, v50, s[22:23] sc0 sc1" % CLM)
I("s_waitcnt vmcnt(0)")
I("v_readfirstlane_b32 s41, v%d" % CLM)
I("s_lshr_b32 s44, s41, s42")
I("s_and_b32 s44, s44, 63")
I("s_cmp_lt_u32 s44, %d" % NST)
I("s_cbranch_scc1 L_hgot")
I("s_mov_b32 s45, 63")
for k in range(4):
    I("s_bfe_u32 s46, s41, 0x%x" % ((6 << 16) | (6 * k)))
    I("s_cmp_lt_u32 s46, s45")
    I("s_cselect_b32 s45, s46, s45")
    I("s_cselect_b32 s40, %d, s40" % k)
I("s_cmp_lt_u32 s45, %d" % NST)
I("s_cbranch_scc1 L_hloop")
I("s_mov_b32 s38, %d" % NTASK)
I("s_branch L_hpub")
A.label("L_hgot")
I("s_add_u32 s38, s44, %d" % PS)
I("s_lshl_b32 s38, s38, 2")
I("s_add_u32 s38, s38, s40")
A.label("L_hpub")
publish()
I("s_cmp_lt_u32 s38, %d" % NTASK)
A.flush()
I("s_cbranch_scc1 L_hloop")
A.label("L_end")
I("s_endpgm")
assert OB + 2 * NWP <= NVG

A.raw("""
.section .rodata,"a"
.p2align 6
.amdhsa_kernel %s_kernel
  .amdhsa_next_free_vgpr %d
  .amdhsa_next_free_sgpr 102
  .amdhsa_accum_offset %d
  .amdhsa_group_segment_fixed_size 0
  .amdhsa_kernarg_size 80
  .amdhsa_user_sgpr_count 2
  .amdhsa_user_sgpr_kernarg_segment_ptr 1
  .amdhsa_system_sgpr_workgroup_id_x 1
  .amdhsa_float_denorm_mode_32 3
.end_amdhsa_kernel
""" % (NAME, NVG, NVG))
open(OUT, "w").write(A.text())
print("wrote", OUT, "nops", A.nops, "lines", len(A.lines), "NWG", NWG, "NTASK", NTASK, "NVG", NVG, "LDS", LDS_BYTES)
```

```python
import sys, math, struct
sys.path.insert(0, "gen")
from asmlib import Asm

NAME = "standalone__kv_cache_quant_int4_int2_kv_with_per_channel_or_per_token_scales__decode"
OUT = sys.argv[1] if len(sys.argv) > 1 else "cdna_kernels/%s.s" % NAME
opts = dict(a.split("=") for a in sys.argv[2:])
LDFLAGS = " " + opts.get("ldflags", "nt").replace("+", " ")
STAMP2 = opts.get("stamp", "0") == "2"
R = int(opts.get("R", "16"))
NWP = int(opts.get("NWP", "4"))
nA = int(opts.get("nA", "10")); nB = int(opts.get("nB", "6")); nC = int(opts.get("nC", "12"))
assert 4 * nA + 2 * nB + nC == 64 and nA + nB + nC >= NWP
NTASK = nA + nB + nC
NWG = 64 * NWP
LOGNWP = int(math.log2(NWP))
WAVES = 4
def f32bits(x): return struct.unpack("<I", struct.pack("<f", x))[0]
CEXP = f32bits(math.log2(math.e) / 16.0)
RING = 72
NVG = RING + 4 * R
NVG = int(opts.get("vgpr", str((NVG + 7) // 8 * 8)))
LDS_STATS = 4 * 2048
LDS_FLAG = LDS_STATS + 512
LDS_BYTES = max(LDS_FLAG + 64, int(opts.get("lds", "0")))
WS_STATS = 8 << 20

A = Asm()
I = A.i
header = """; Kernarg layout: q qk qv k_scales k_zeros v_scales v_zeros out debug ws (8 bytes each)
; split-KV decode attention over an int-coded KV cache. One workgroup = 4 waves that stream interleaved token rows.
; Each (batch, kv-head) has NWP workgroups sharing a task queue (counter in d_debug); the last one to finish combines.
; @launch grid=(%d,1,1) block=(%d,1,1) lds=%d
.amdgcn_target "amdgcn-amd-amdhsa--gfx950"
.text
.globl %s_kernel
.p2align 8
.type %s_kernel,@function
%s_kernel:""" % (NWG, (WAVES + 1) * 64, LDS_BYTES, NAME, NAME, NAME)
A.raw(header)

def row(r): return RING + 4 * (r % R)
def rowr(r): return "v[%d:%d]" % (row(r), row(r) + 3)
VROW = 2; VL16 = 3; VL8 = 4; VTOK = 5
KZ = 6; KS = 10; Q0 = 14; Q1 = 16
KP = 18; SA = 22; TA = 26; TB = 30; LA = 34; LB = 35; ACC = 36; TMP = 44; P = 52; M_ = 53; L_ = 54
ZSA = 55; ZSB = 56
RAW = 60
VT = 68
CLM = 51

def load_row(r):
    if r < 16: srd, so, rr = "s[24:27]", "s31", r
    else: srd, so, rr = "s[96:99]", "s95", r - 16
    if rr:
        I("s_add_u32 s3, %s, 0x%x" % (so, rr * 4096)); so = "s3"
    I("buffer_load_dwordx4 %s, v%d, %s, %s offen%s" % (rowr(r), VROW, srd, so, LDFLAGS))

SEG = 64 // NWP
pA = int(opts.get("pA", "2")); pB = int(opts.get("pB", "2")); pC = int(opts.get("pC", "4"))
INTER = opts.get("inter", "1") == "1"
if INTER:
    assert 4 * pA + 2 * pB + pC == SEG
    NTASK = NWP * (pA + pB + pC)
def decode_task():
    if INTER:
        a_, b_, c_ = pA, pB, pC
        I("s_cmp_ge_u32 s38, %d" % NTASK)
        I("s_cselect_b32 s3, 1, 0")
        I("s_and_b32 s35, s38, %d" % (NWP - 1))
        I("s_lshr_b32 s38, s38, %d" % LOGNWP)
    else:
        a_, b_, c_ = nA, nB, nC
        I("s_cmp_ge_u32 s38, %d" % NTASK)
        I("s_cselect_b32 s3, 1, 0")
        I("s_mov_b32 s35, 0")
    I("s_lshl_b32 s94, s38, 2")
    I("s_mov_b32 s93, 4")
    I("s_lshl_b32 s39, s38, 1")
    I("s_add_u32 s39, s39, %d" % (2 * a_))
    I("s_cmp_ge_u32 s38, %d" % a_)
    I("s_cselect_b32 s94, s39, s94")
    I("s_cselect_b32 s93, 2, s93")
    I("s_add_u32 s39, s38, %d" % (3 * a_ + b_))
    I("s_cmp_ge_u32 s38, %d" % (a_ + b_))
    I("s_cselect_b32 s94, s39, s94")
    I("s_cselect_b32 s93, 1, s93")
    I("s_mul_i32 s35, s35, %d" % SEG)
    I("s_add_u32 s94, s94, s35")
    I("s_cmp_eq_u32 s3, 1")
    I("s_cselect_b32 s93, 0, s93")
    I("s_cselect_b32 s94, 0, s94")
    I("s_lshl_b32 s35, s28, 6")
    I("s_add_u32 s94, s35, s94")
    I("s_lshl_b32 s35, s94, 16")

def small_loads():
    I("s_lshr_b32 s38, s94, 1")
    I("s_lshl_b32 s38, s38, 9")
    I("v_add_u32 v%d, s38, v%d" % (VT, VL8))
    I("s_cmp_eq_u32 s93, 4")
    I("s_cselect_b32 s38, 0x200, 0")
    I("v_add_u32 v%d, s38, v%d" % (VT + 1, VT))
    I("global_load_dwordx2 v[%d:%d], v%d, s[12:13]" % (RAW, RAW + 1, VT))
    I("global_load_dwordx2 v[%d:%d], v%d, s[12:13]" % (RAW + 2, RAW + 3, VT + 1))
    I("global_load_dwordx2 v[%d:%d], v%d, s[10:11]" % (RAW + 4, RAW + 5, VT))
    I("global_load_dwordx2 v[%d:%d], v%d, s[10:11]" % (RAW + 6, RAW + 7, VT + 1))
    I("s_lshl_b32 s38, s94, 7")
    I("v_add_u32 v%d, s38, v%d" % (VT, VTOK))
    I("v_min_u32 v%d, 0x7fff6, v%d" % (VT, VT))
    I("global_load_ushort v57, v%d, s[16:17]" % VT)
    I("global_load_ushort v58, v%d, s[14:15]" % VT)
    I("global_load_ushort v59, v%d, s[16:17] offset:8" % VT)
    I("global_load_ushort v70, v%d, s[14:15] offset:8" % VT)

def unpack(g):
    z, s = RAW + 2 * g, RAW + 4 + 2 * g
    I("v_lshlrev_b32 v%d, 16, v%d" % (KZ, z)); I("v_and_b32 v%d, 0xffff0000, v%d" % (KZ + 1, z))
    I("v_lshlrev_b32 v%d, 16, v%d" % (KZ + 2, z + 1)); I("v_and_b32 v%d, 0xffff0000, v%d" % (KZ + 3, z + 1))
    I("v_lshlrev_b32 v%d, 16, v%d" % (KS, s)); I("v_and_b32 v%d, 0xffff0000, v%d" % (KS + 1, s))
    I("v_lshlrev_b32 v%d, 16, v%d" % (KS + 2, s + 1)); I("v_and_b32 v%d, 0xffff0000, v%d" % (KS + 3, s + 1))

def stamp2():
    if not STAMP2: return
    I("s_memrealtime s[38:39]")
    I("s_waitcnt lgkmcnt(0)")
    I("v_mov_b32 v69, s38")
    I("global_store_dword v71, v69, s[22:23]")
    I("v_add_u32 v71, 4, v71")

I("s_cmp_ge_u32 s2, %d" % NWG)
I("s_cbranch_scc1 L_end")
I("s_load_dwordx16 s[4:19], s[0:1], 0")
I("s_load_dwordx4 s[20:23], s[0:1], 64")
I("v_lshrrev_b32 v1, 6, v0")
I("v_readfirstlane_b32 s33, v1")
I("v_and_b32 v1, 63, v0")
I("v_lshlrev_b32 v%d, 4, v1" % VL16)
I("v_lshlrev_b32 v%d, 3, v1" % VL8)
I("s_lshl_b32 s38, s33, 10")
I("v_add_u32 v%d, s38, v%d" % (VROW, VL16))
I("v_and_b32 v44, 3, v1")
I("v_lshlrev_b32 v44, 7, v44")
I("v_bfe_u32 v45, v1, 4, 1")
I("v_lshl_add_u32 v44, v45, 4, v44")
I("v_bfe_u32 v45, v1, 3, 1")
I("v_lshl_add_u32 v44, v45, 5, v44")
I("v_bfe_u32 v45, v1, 2, 1")
I("v_lshl_add_u32 v44, v45, 6, v44")
I("s_lshl_b32 s38, s33, 1")
I("v_add_u32 v%d, s38, v44" % VTOK)
I("s_lshr_b32 s28, s2, %d" % LOGNWP)
I("s_and_b32 s38, s2, %d" % (NWP - 1))
I("s_mov_b32 s100, s38")
decode_task()
I("s_lshl_b32 s38, s28, 10")
I("v_add_u32 v45, s38, v%d" % VL8)
I("s_mov_b32 s92, 0x%08x" % CEXP)
I("s_mov_b32 s29, 0")
I("s_lshl_b32 s38, s28, 2")
I("v_mov_b32 v49, s38")
I("v_mov_b32 v50, 1")
I("v_mov_b32 v%d, 0xff800000" % M_)
I("v_mov_b32 v%d, 0" % L_)
for c in range(8): I("v_mov_b32 v%d, 0" % (ACC + c))
I("s_waitcnt lgkmcnt(0)")
I("s_cmp_eq_u32 s33, 4")
I("s_cbranch_scc1 L_helper")
I("s_and_b32 s7, s7, 0xffff")
I("s_and_b32 s9, s9, 0xffff")
I("s_mov_b32 s24, s6"); I("s_mov_b32 s25, s7")
I("s_mov_b32 s26, 0x10000000")
I("s_mov_b32 s27, 0x00020000")
I("s_mov_b32 s96, s6"); I("s_mov_b32 s97, s7")
I("s_mov_b32 s98, 0x10000000")
I("s_mov_b32 s99, 0x00020000")
I("global_load_dwordx2 v[14:15], v45, s[4:5]")
I("global_load_dwordx2 v[16:17], v45, s[4:5] offset:512")
small_loads()
I("s_mov_b32 s31, s35")
for r in range(R): load_row(r)
if STAMP2:
    I("s_mul_i32 s39, s2, 4")
    I("s_add_u32 s39, s39, s33")
    I("s_lshl_b32 s39, s39, 9")
    I("s_add_u32 s39, s39, 0x1000000")
    I("v_mov_b32 v71, s39")
    I("s_getreg_b32 s38, hwreg(HW_REG_XCC_ID)")
    I("v_mov_b32 v69, s38")
    I("global_store_dword v71, v69, s[22:23]")
    I("v_add_u32 v71, 4, v71")
    stamp2()

def tree_step(Tr, j, s0, s1):
    T16, Tt, T8a, T8b = Tr, Tr + 1, Tr + 2, Tr + 3
    I("v_permlane32_swap_b32 v%d, v%d" % (s0, s1))
    if j % 2 == 0:
        I("v_add_f32 v%d, v%d, v%d" % (T16, s0, s1)); return
    I("v_add_f32 v%d, v%d, v%d" % (Tt, s0, s1))
    I("v_permlane16_swap_b32 v%d, v%d" % (T16, Tt))
    T8 = T8a if (j >> 2) == 0 else T8b
    if (j >> 1) % 2 == 0:
        I("v_add_f32 v%d, v%d, v%d" % (T8, T16, Tt)); return
    I("v_add_f32 v%d, v%d, v%d" % (Tt, T16, Tt))
    I("v_add_f32_dpp v%d, v%d, v%d row_ror:8 row_mask:0xf bank_mask:0x3" % (T8, T8, T8))
    I("v_add_f32_dpp v%d, v%d, v%d row_ror:8 row_mask:0xf bank_mask:0xc" % (T8, Tt, Tt))
    if (j >> 2) == 0: return
    I("v_add_f32_dpp v%d, v%d, v%d row_half_mirror row_mask:0xf bank_mask:0x5" % (T8a, T8a, T8a))
    I("v_add_f32_dpp v%d, v%d, v%d row_half_mirror row_mask:0xf bank_mask:0xa" % (T8a, T8b, T8b))
    I("v_add_f32_dpp v%d, v%d, v%d quad_perm:[1,0,3,2] row_mask:0xf bank_mask:0xf" % (T8a, T8a, T8a))
    I("v_add_f32_dpp v%d, v%d, v%d quad_perm:[2,3,0,1] row_mask:0xf bank_mask:0xf" % (T8a, T8a, T8a))

LATE = opts.get("late", "0") == "1"
A.label("L_task")
if LATE: I("s_barrier")
I("s_mov_b32 s30, s35")
I("s_mov_b32 s34, s93")
I("s_waitcnt vmcnt(%d)" % R)
unpack(0)
I("v_lshl_or_b32 v%d, v58, 16, v57" % ZSA)
I("v_lshl_or_b32 v%d, v70, 16, v59" % ZSB)
I("v_mov_b32 v%d, 0xff800000" % LA)
I("v_mov_b32 v%d, 0xff800000" % LB)
I("s_mov_b32 s32, 0")
I("s_mov_b32 s36, 0x11111111")
I("s_mov_b32 s37, 0x11111111")
A.label("L_kloop")
I("s_lshl_b32 s31, s32, 16")
I("s_add_u32 s31, s31, s30")
I("s_mov_b32 s24, s6"); I("s_mov_b32 s25, s7"); I("s_mov_b32 s26, 0x10000000")
I("s_add_u32 s95, s31, 0x10000")
I("s_add_u32 s32, s32, 1")
I("s_cmp_lt_u32 s32, s34")
I("s_cselect_b32 s96, s6, s8")
I("s_cselect_b32 s97, s7, s9")
I("s_cselect_b32 s95, s95, s30")
I("s_mov_b32 s98, 0x10000000")
for j in range(8):
    a, b = row(2 * j), row(2 * j + 1)
    I("s_waitcnt vmcnt(%d)" % (R - 2))
    regs = [a + c for c in range(4)] + [b + c for c in range(4)]
    for x in regs: I("v_cvt_f32_i32 v%d, v%d" % (x, x))
    for n, x in enumerate(regs): I("v_sub_f32 v%d, v%d, v%d" % (x, x, KZ + n % 4))
    for x in regs: I("v_cvt_pk_bf16_f32 v%d, 0, v%d" % (x, x))
    for n, x in enumerate(regs): I("v_mul_f32 v%d, v%d, v%d" % (x, x, KS + n % 4))
    I("v_cvt_pk_bf16_f32 v%d, v%d, v%d" % (KP + 0, a, a + 1))
    I("v_cvt_pk_bf16_f32 v%d, v%d, v%d" % (KP + 1, a + 2, a + 3))
    I("v_cvt_pk_bf16_f32 v%d, v%d, v%d" % (KP + 2, b, b + 1))
    I("v_cvt_pk_bf16_f32 v%d, v%d, v%d" % (KP + 3, b + 2, b + 3))
    load_row(2 * j + R); load_row(2 * j + 1 + R)
    I("v_dot2_f32_bf16 v%d, v%d, v%d, 0" % (SA + 0, KP + 0, Q0))
    I("v_dot2_f32_bf16 v%d, v%d, v%d, 0" % (SA + 1, KP + 0, Q1))
    I("v_dot2_f32_bf16 v%d, v%d, v%d, 0" % (SA + 2, KP + 2, Q0))
    I("v_dot2_f32_bf16 v%d, v%d, v%d, 0" % (SA + 3, KP + 2, Q1))
    I("v_dot2_f32_bf16 v%d, v%d, v%d, v%d" % (SA + 0, KP + 1, Q0 + 1, SA + 0))
    I("v_dot2_f32_bf16 v%d, v%d, v%d, v%d" % (SA + 1, KP + 1, Q1 + 1, SA + 1))
    I("v_dot2_f32_bf16 v%d, v%d, v%d, v%d" % (SA + 2, KP + 3, Q0 + 1, SA + 2))
    I("v_dot2_f32_bf16 v%d, v%d, v%d, v%d" % (SA + 3, KP + 3, Q1 + 1, SA + 3))
    tree_step(TA, j, SA + 0, SA + 1)
    tree_step(TB, j, SA + 2, SA + 3)
I("v_cndmask_b32 v%d, v%d, v%d, s[36:37]" % (LA, LA, TA + 2))
I("v_cndmask_b32 v%d, v%d, v%d, s[36:37]" % (LB, LB, TB + 2))
I("s_lshl_b64 s[36:37], s[36:37], 1")
stamp2()
I("s_cmp_lg_u32 s32, 2")
I("s_cbranch_scc1 L_nosw")
unpack(1)
A.label("L_nosw")
I("s_cmp_lt_u32 s32, s34")
A.flush()
I("s_cbranch_scc1 L_kloop")

I("s_lshl_b32 s38, s29, 2")
I("s_add_u32 s38, s38, %d" % LDS_FLAG)
I("v_mov_b32 v%d, s38" % VT)
I("s_xor_b32 s29, s29, 1")
I("s_barrier")
I("ds_read_b32 v%d, v%d" % (VT + 1, VT))

t, t2, eA, eB, sc = TMP, TMP + 1, TMP + 2, TMP + 3, TMP + 4
I("v_cvt_pk_bf16_f32 v%d, 0, v%d" % (LA, LA))
I("v_cvt_pk_bf16_f32 v%d, 0, v%d" % (LB, LB))
I("v_max3_f32 v%d, v%d, v%d, v%d" % (t, LA, LB, M_))
def allreduce32(op, t, t2):
    for ctl in ("quad_perm:[1,0,3,2]", "quad_perm:[2,3,0,1]", "row_half_mirror", "row_mirror"):
        I("%s_dpp v%d, v%d, v%d %s row_mask:0xf bank_mask:0xf" % (op, t, t, t, ctl))
    I("v_mov_b32 v%d, v%d" % (t2, t))
    I("v_permlane16_swap_b32 v%d, v%d" % (t, t2))
    I("%s v%d, v%d, v%d" % (op, t, t, t2))
allreduce32("v_max_f32", t, t2)
I("v_sub_f32 v%d, v%d, v%d" % (sc, M_, t))
I("v_mov_b32 v%d, v%d" % (M_, t))
I("v_sub_f32 v%d, v%d, v%d" % (eA, LA, M_))
I("v_sub_f32 v%d, v%d, v%d" % (eB, LB, M_))
I("v_mul_f32 v%d, s92, v%d" % (sc, sc))
I("v_mul_f32 v%d, s92, v%d" % (eA, eA))
I("v_mul_f32 v%d, s92, v%d" % (eB, eB))
I("v_exp_f32 v%d, v%d" % (sc, sc))
I("v_exp_f32 v%d, v%d" % (eA, eA))
I("v_exp_f32 v%d, v%d" % (eB, eB))
I("v_add_f32 v%d, v%d, v%d" % (t, eA, eB))
I("v_cvt_pk_bf16_f32 v%d, v%d, v%d" % (P, eA, eB))
I("v_readlane_b32 s40, v%d, 0" % sc)
I("v_readlane_b32 s41, v%d, 32" % sc)
allreduce32("v_add_f32", t, t2)
I("v_fma_f32 v%d, v%d, v%d, v%d" % (L_, L_, sc, t))
for h in range(2):
    for c in range(4): I("v_mul_f32 v%d, s%d, v%d" % (ACC + 4 * h + c, 40 + h, ACC + 4 * h + c))
I("s_waitcnt lgkmcnt(0)")
I("v_readfirstlane_b32 s38, v%d" % (VT + 1))
decode_task()
I("s_cmp_eq_u32 s93, 0")
I("s_cbranch_scc1 L_nonext")
small_loads()
A.label("L_nonext")
I("s_mov_b32 s32, 0")

def lane_of(h, j): return h * 32 + (j & 1) * 16 + ((j >> 1) & 1) * 8 + ((j >> 2) & 1) * 4
A.label("L_vloop")
I("s_lshl_b32 s31, s32, 16")
I("s_add_u32 s31, s31, s30")
I("s_mov_b32 s24, s8"); I("s_mov_b32 s25, s9"); I("s_mov_b32 s26, 0x10000000")
I("s_add_u32 s95, s31, 0x10000")
I("s_cmp_eq_u32 s93, 0")
I("s_cselect_b32 s39, 0, 0x10000000")
I("s_add_u32 s32, s32, 1")
I("s_cmp_lt_u32 s32, s34")
I("s_cselect_b32 s96, s8, s6")
I("s_cselect_b32 s97, s9, s7")
I("s_cselect_b32 s95, s95, s35")
I("s_cselect_b32 s98, 0x10000000, s39")
for j in range(8):
    a, b = row(2 * j), row(2 * j + 1)
    sp = 40 + 8 * (j % 2)
    I("v_readlane_b32 s%d, v%d, %d" % (sp + 2, ZSA, lane_of(0, j)))
    I("v_readlane_b32 s%d, v%d, %d" % (sp + 3, ZSB, lane_of(0, j)))
    I("v_readlane_b32 s%d, v%d, %d" % (sp, P, lane_of(0, j)))
    I("v_readlane_b32 s%d, v%d, %d" % (sp + 1, P, lane_of(1, j)))
    I("s_lshl_b32 s%d, s%d, 16" % (sp + 4, sp + 2))
    I("s_and_b32 s%d, s%d, 0xffff0000" % (sp + 5, sp + 2))
    I("s_lshl_b32 s%d, s%d, 16" % (sp + 6, sp + 3))
    I("s_and_b32 s%d, s%d, 0xffff0000" % (sp + 7, sp + 3))
    I("s_waitcnt vmcnt(%d)" % (R - 2))
    regs = [a + c for c in range(4)] + [b + c for c in range(4)]
    for x in regs: I("v_cvt_f32_i32 v%d, v%d" % (x, x))
    for n, x in enumerate(regs): I("v_subrev_f32 v%d, s%d, v%d" % (x, sp + 4 + 2 * (n // 4), x))
    for x in regs: I("v_cvt_pk_bf16_f32 v%d, 0, v%d" % (x, x))
    for n, x in enumerate(regs): I("v_mul_f32 v%d, s%d, v%d" % (x, sp + 5 + 2 * (n // 4), x))
    for c in range(4): I("v_cvt_pk_bf16_f32 v%d, v%d, v%d" % (KP + c, a + c, b + c))
    load_row(2 * j + R); load_row(2 * j + 1 + R)
    for h in range(2):
        for c in range(4):
            I("v_dot2c_f32_bf16 v%d, s%d, v%d" % (ACC + 4 * h + c, sp + h, KP + c))
for x in (P, ZSA, ZSB):
    I("v_mov_b32_dpp v%d, v%d quad_perm:[1,2,3,0] row_mask:0xf bank_mask:0xf" % (x, x))
stamp2()
I("s_cmp_lt_u32 s32, s34")
A.flush()
I("s_cbranch_scc1 L_vloop")
I("s_cmp_lg_u32 s93, 0")
I("s_cbranch_scc1 L_task")

if STAMP2:
    I("v_mov_b32 v69, -1")
    I("global_store_dword v71, v69, s[22:23]")
I("s_lshl_b32 s36, s33, 11")
I("v_add_u32 v44, s36, v%d" % VL16)
I("ds_write_b128 v44, v[%d:%d]" % (ACC, ACC + 3))
I("ds_write_b128 v44, v[%d:%d] offset:1024" % (ACC + 4, ACC + 7))
I("v_lshrrev_b32 v45, 5, v1")
I("v_lshlrev_b32 v45, 7, v45")
I("s_lshl_b32 s36, s33, 2")
I("s_add_u32 s36, s36, %d" % LDS_STATS)
I("v_add_u32 v45, s36, v45")
I("ds_write_b32 v45, v%d" % M_)
I("ds_write_b32 v45, v%d offset:256" % L_)
I("s_waitcnt vmcnt(0) lgkmcnt(0)")
I("s_barrier")
I("v_lshlrev_b32 v46, 2, v0")
I("v_mov_b32 v45, %d" % LDS_STATS)
for h in range(2):
    I("ds_read_b128 v[%d:%d], v45 offset:%d" % (60 + 12 * h, 63 + 12 * h, 128 * h))
    I("ds_read_b128 v[%d:%d], v45 offset:%d" % (64 + 12 * h, 67 + 12 * h, 256 + 128 * h))
    for w in range(4): I("ds_read_b32 v%d, v46 offset:%d" % (68 + 12 * h + w, w * 2048 + 1024 * h))
I("s_waitcnt lgkmcnt(0)")
I("s_lshl_b32 s36, s2, 11")
I("v_add_u32 v47, s36, v46")
for h in range(2):
    m0, l0, a0 = 60 + 12 * h, 64 + 12 * h, 68 + 12 * h
    mm, ll, oo = 84 + 4 * h, 85 + 4 * h, 86 + 4 * h
    I("v_max3_f32 v%d, v%d, v%d, v%d" % (mm, m0, m0 + 1, m0 + 2))
    I("v_max_f32 v%d, v%d, v%d" % (mm, mm, m0 + 3))
    for w in range(4):
        I("v_sub_f32 v%d, v%d, v%d" % (m0 + w, m0 + w, mm))
        I("v_mul_f32 v%d, s92, v%d" % (m0 + w, m0 + w))
        I("v_exp_f32 v%d, v%d" % (m0 + w, m0 + w))
    I("v_mul_f32 v%d, v%d, v%d" % (ll, m0, l0))
    I("v_mul_f32 v%d, v%d, v%d" % (oo, m0, a0))
    for w in range(1, 4):
        I("v_fmac_f32 v%d, v%d, v%d" % (ll, m0 + w, l0 + w))
        I("v_fmac_f32 v%d, v%d, v%d" % (oo, m0 + w, a0 + w))
    I("global_store_dword v47, v%d, s[22:23] offset:%d sc1" % (oo, 1024 * h))
I("s_cmp_lg_u32 s33, 0")
I("s_cbranch_scc1 L_nostat")
I("s_lshl_b32 s36, s2, 4")
I("s_add_u32 s36, s36, %d" % WS_STATS)
I("v_mov_b32 v48, s36")
I("s_mov_b64 exec, 1")
I("global_store_dwordx2 v48, v[84:85], s[22:23] sc1")
I("global_store_dwordx2 v48, v[88:89], s[22:23] offset:8 sc1")
I("s_mov_b64 exec, -1")
A.label("L_nostat")
I("s_waitcnt vmcnt(0)")
I("s_barrier")
I("v_mov_b32 v47, %d" % (LDS_FLAG + 16))
I("s_cmp_lg_u32 s33, 0")
I("s_cbranch_scc1 L_wait2")
I("v_mov_b32 v45, 0x1000000")
I("s_mov_b64 exec, 1")
I("global_atomic_add v48, v49, v45, s[20:21] sc0 sc1")
I("s_waitcnt vmcnt(0)")
I("ds_write_b32 v47, v48")
I("s_mov_b64 exec, -1")
I("s_waitcnt lgkmcnt(0)")
A.label("L_wait2")
I("s_barrier")
I("ds_read_b32 v48, v47")
I("s_waitcnt lgkmcnt(0)")
I("v_readfirstlane_b32 s36, v48")
I("s_lshr_b32 s36, s36, 24")
I("s_cmp_lg_u32 s36, %d" % (NWP - 1))
I("s_cbranch_scc1 L_end")
I("s_lshl_b32 s37, s28, %d" % (11 + LOGNWP))
I("v_add_u32 v47, s37, v46")
I("s_lshl_b32 s38, s28, %d" % (4 + LOGNWP))
I("s_add_u32 s38, s38, %d" % WS_STATS)
I("v_mov_b32 v48, s38")
SB = 60; OB = 60 + 4 * NWP
for s_ in range(NWP):
    I("global_load_dwordx4 v[%d:%d], v48, s[22:23] offset:%d sc1" % (SB + 4 * s_, SB + 4 * s_ + 3, 16 * s_))
for s_ in range(NWP):
    if s_ and s_ % 2 == 0: I("v_add_u32 v47, 0x1000, v47")
    for h in range(2):
        I("global_load_dword v%d, v47, s[22:23] offset:%d sc1" % (OB + 2 * s_ + h, 2048 * (s_ % 2) + 1024 * h))
I("s_waitcnt vmcnt(0)")
I("s_lshl_b32 s39, s28, 10")
I("v_lshlrev_b32 v46, 1, v0")
I("v_add_u32 v46, s39, v46")
for h in range(2):
    I("v_mov_b32 v44, v%d" % (SB + 2 * h))
    for s_ in range(1, NWP): I("v_max_f32 v44, v44, v%d" % (SB + 4 * s_ + 2 * h))
    for s_ in range(NWP):
        r_ = SB + 4 * s_ + 2 * h
        I("v_sub_f32 v%d, v%d, v44" % (r_, r_))
        I("v_mul_f32 v%d, s92, v%d" % (r_, r_))
        I("v_exp_f32 v%d, v%d" % (r_, r_))
    I("v_mul_f32 v45, v%d, v%d" % (SB + 2 * h, SB + 2 * h + 1))
    I("v_mul_f32 v48, v%d, v%d" % (SB + 2 * h, OB + h))
    for s_ in range(1, NWP):
        I("v_fmac_f32 v45, v%d, v%d" % (SB + 4 * s_ + 2 * h, SB + 4 * s_ + 2 * h + 1))
        I("v_fmac_f32 v48, v%d, v%d" % (SB + 4 * s_ + 2 * h, OB + 2 * s_ + h))
    I("v_rcp_f32 v45, v45")
    I("v_mul_f32 v48, v48, v45")
    I("v_cvt_pk_bf16_f32 v48, v48, v48")
    I("global_store_short v46, v48, s[18:19] offset:%d" % (512 * h))
I("s_branch L_end")
A.label("L_helper")
assert NWP == 4 and INTER
NPOS = pA + pB + pC
PS = int(opts.get("PS", str(pA + pB)))
NST = NPOS - PS
CNT_BASE = 12 << 20
I("s_mov_b64 exec, 1")
I("s_and_b32 s40, s2, 3")
I("s_lshl_b32 s47, s28, 8")
I("s_add_u32 s47, s47, %d" % CNT_BASE)
I("v_mov_b32 v48, s47")
I("s_cmp_lg_u32 s40, 0")
I("s_cbranch_scc1 L_hnoinit")
I("v_mov_b32 v47, 0")
I("global_store_dword v48, v47, s[22:23] sc1")
I("s_waitcnt vmcnt(0)")
I("v_mov_b32 v47, 1")
I("global_atomic_or v49, v47, s[20:21] sc1")
A.label("L_hnoinit")
def publish():
    I("s_lshl_b32 s39, s29, 2")
    I("s_add_u32 s39, s39, %d" % LDS_FLAG)
    I("v_mov_b32 v%d, s39" % VT)
    I("v_mov_b32 v%d, s38" % (VT + 1))
    I("s_xor_b32 s29, s29, 1")
    I("ds_write_b32 v%d, v%d" % (VT, VT + 1))
    I("s_waitcnt lgkmcnt(0)")
    I("s_barrier")
if PS > 1:
    I("s_mov_b32 s38, s40")
    A.label("L_hstatic")
    if LATE: I("s_barrier")
    I("s_add_u32 s38, s38, 4")
    publish()
    I("s_cmp_lt_u32 s38, %d" % (4 * (PS - 1)))
    A.flush()
    I("s_cbranch_scc1 L_hstatic")
A.label("L_hpoll")
I("global_load_dword v47, v49, s[20:21] sc1")
I("s_waitcnt vmcnt(0)")
I("v_readfirstlane_b32 s41, v47")
I("s_and_b32 s41, s41, 1")
I("s_cmp_eq_u32 s41, 1")
I("s_cbranch_scc1 L_hnext")
I("s_sleep 8")
I("s_branch L_hpoll")
A.label("L_hnext")
if LATE: I("s_barrier")
A.label("L_hloop")
I("s_mul_i32 s42, s40, 6")
I("s_lshl_b32 s43, 1, s42")
I("v_mov_b32 v50, s43")
I("global_atomic_add v%d, v48, v50, s[22:23] sc0 sc1" % CLM)
I("s_waitcnt vmcnt(0)")
I("v_readfirstlane_b32 s41, v%d" % CLM)
I("s_lshr_b32 s44, s41, s42")
I("s_and_b32 s44, s44, 63")
I("s_cmp_lt_u32 s44, %d" % NST)
I("s_cbranch_scc1 L_hgot")
I("s_mov_b32 s45, 63")
for k in range(4):
    I("s_bfe_u32 s46, s41, 0x%x" % ((6 << 16) | (6 * k)))
    I("s_cmp_lt_u32 s46, s45")
    I("s_cselect_b32 s45, s46, s45")
    I("s_cselect_b32 s40, %d, s40" % k)
I("s_cmp_lt_u32 s45, %d" % NST)
I("s_cbranch_scc1 L_hloop")
I("s_mov_b32 s38, %d" % NTASK)
I("s_branch L_hpub")
A.label("L_hgot")
I("s_add_u32 s38, s44, %d" % PS)
I("s_lshl_b32 s38, s38, 2")
I("s_add_u32 s38, s38, s40")
A.label("L_hpub")
publish()
I("s_cmp_lt_u32 s38, %d" % NTASK)
A.flush()
I("s_cbranch_scc1 L_hnext")
A.label("L_end")
I("s_endpgm")
assert OB + 2 * NWP <= NVG

A.raw("""
.section .rodata,"a"
.p2align 6
.amdhsa_kernel %s_kernel
  .amdhsa_next_free_vgpr %d
  .amdhsa_next_free_sgpr 102
  .amdhsa_accum_offset %d
  .amdhsa_group_segment_fixed_size 0
  .amdhsa_kernarg_size 80
  .amdhsa_user_sgpr_count 2
  .amdhsa_user_sgpr_kernarg_segment_ptr 1
  .amdhsa_system_sgpr_workgroup_id_x 1
  .amdhsa_float_denorm_mode_32 3
.end_amdhsa_kernel
""" % (NAME, NVG, NVG))
open(OUT, "w").write(A.text())
print("wrote", OUT, "nops", A.nops, "lines", len(A.lines), "NWG", NWG, "NTASK", NTASK, "NVG", NVG, "LDS", LDS_BYTES)
```
